```python
import torch

def _softmax(x, axis=-1):
    return torch.softmax(x, dim=axis)
def _gelu(x):
    return torch.nn.functional.gelu(x, approximate="tanh")
def _silu(x):
    return torch.nn.functional.silu(x)
def _sigmoid(x):
    return torch.sigmoid(x)
def _layernorm(x, axis=-1, eps=1e-5):
    m = x.mean(dim=axis, keepdim=True)
    v = x.var(dim=axis, keepdim=True, unbiased=False)
    return (x - m) / torch.sqrt(v + eps)
def _scatter_add(tgt, idx, src, axis=0):
    return tgt.clone().index_add_(axis, idx, src)
def _segment_sum(src, seg, n):
    out = torch.zeros((n,) + src.shape[1:], dtype=src.dtype)
    return out.index_add_(0, seg, src)
def _pad(x, pw):
    flat = tuple(v for pair in reversed(pw) for v in pair)
    return torch.nn.functional.pad(x, flat)

kernel_name = 'interleave_layers__grouped_kv_mqa__glu_gated_glu__prompt'

def setup_inputs():

    _w = (lambda a: (lambda t: t.to(torch.bfloat16) if t.is_floating_point() else t)(torch.as_tensor(a)))
    def _A_setup():
        B, S, D, H = 1, 2048, 448, 16
        Dh = D // H
        return {
            "x": _w((lambda *s: torch.randn(*s, dtype=torch.bfloat16) * 0.05)(B, S, D)),
            "wq": _w((lambda *s: torch.randn(*s, dtype=torch.bfloat16) * 0.05)(D, H * Dh)),
            "wk": _w((lambda *s: torch.randn(*s, dtype=torch.bfloat16) * 0.05)(D, Dh)),
            "wv": _w((lambda *s: torch.randn(*s, dtype=torch.bfloat16) * 0.05)(D, Dh)),
            "wo": _w((lambda *s: torch.randn(*s, dtype=torch.bfloat16) * 0.05)(H * Dh, D)),
        }
    _A_in = _A_setup()

    def _B_setup():
        B, S, D, F = 1, 2048, 448, 1792
        return {
            "x": _w((lambda *s: torch.randn(*s, dtype=torch.bfloat16) * 0.05)(B, S, D)),
            "w_gate": _w((lambda *s: torch.randn(*s, dtype=torch.bfloat16) * 0.05)(D, F)),
            "w_up": _w((lambda *s: torch.randn(*s, dtype=torch.bfloat16) * 0.05)(D, F)),
            "w_down": _w((lambda *s: torch.randn(*s, dtype=torch.bfloat16) * 0.05)(F, D)),
        }
    _B_in = _B_setup()

    return {
        "A_x": _A_in["x"],
        "A_wq": _A_in["wq"],
        "A_wk": _A_in["wk"],
        "A_wv": _A_in["wv"],
        "A_wo": _A_in["wo"],
        "B_x": _B_in["x"],
        "B_w_gate": _B_in["w_gate"],
        "B_w_up": _B_in["w_up"],
        "B_w_down": _B_in["w_down"],
    }

def reference(A_x, A_wq, A_wk, A_wv, A_wo, B_x, B_w_gate, B_w_up, B_w_down):
    def _A_ref(x, wq, wk, wv, wo):
        B, S, D = x.shape
        H = 16
        Dh = D // H
        q = (lambda x, *d: x.permute(*d))((x @ wq).reshape(B, S, H, Dh), 0, 2, 1, 3)
        k = x @ wk
        v = x @ wv
        scores = torch.einsum("bhqd,bkd->bhqk", q, k) * (Dh ** -0.5)
        p = _softmax(scores, axis=-1)
        o = torch.einsum("bhqk,bkd->bhqd", p, v)
        return (lambda x, *d: x.permute(*d))(o, 0, 2, 1, 3).reshape(B, S, H * Dh) @ wo

    def _B_ref(x, w_gate, w_up, w_down):
        g = torch.einsum("bsd,df->bsf", x, w_gate)
        u = torch.einsum("bsd,df->bsf", x, w_up)
        h = _sigmoid(g) * u
        return torch.einsum("bsf,fd->bsd", h, w_down)

    x = A_x
    x = x + _A_ref(_layernorm(x, axis=-1), A_wq, A_wk, A_wv, A_wo)
    x = x + _B_ref(_layernorm(x, axis=-1), B_w_gate, B_w_up, B_w_down)
    x = x + _A_ref(_layernorm(x, axis=-1), A_wq, A_wk, A_wv, A_wo)
    x = x + _B_ref(_layernorm(x, axis=-1), B_w_gate, B_w_up, B_w_down)
    return x
```

```python
class A:
    def __init__(self):
        self.l = []
    def __call__(self, s):
        for x in s.split("\n"):
            x = x.strip()
            if x: self.l.append("  " + x if not x.endswith(":") else x)
    def raw(self, s): self.l.append(s)
    def text(self): return "\n".join(self.l) + "\n"
    def wait(self, vm=None, lgkm=None):
        p = []
        if vm is not None:
            assert 0 <= vm <= 63, vm
            p.append(f"vmcnt({vm})")
        if lgkm is not None:
            assert 0 <= lgkm <= 15, lgkm
            p.append(f"lgkmcnt({lgkm})")
        self("s_waitcnt " + " ".join(p))
    def srd(self, d, base, size, off=0):
        if off:
            self(f"s_add_u32 s{d}, s{base}, {hex(off)}\ns_addc_u32 s{d+1}, s{base+1}, 0")
        else:
            self(f"s_mov_b32 s{d}, s{base}\ns_mov_b32 s{d+1}, s{base+1}")
        self(f"s_mov_b32 s{d+2}, {hex(size)}\ns_mov_b32 s{d+3}, 0x20000")

def v(a, n=1): return f"v{a}" if n == 1 else f"v[{a}:{a+n-1}]"
def ac(a, n=1): return f"a{a}" if n == 1 else f"a[{a}:{a+n-1}]"
def s(a, n=1): return f"s{a}" if n == 1 else f"s[{a}:{a+n-1}]"
def R(a, n=1):
    if a >= 256: return ac(a - 256, n)
    assert a + n <= 256
    return v(a, n)

def kernel_head(name):
    return f".globl {name}\n.p2align 8\n.type {name},@function\n{name}:\n"
def kernel_desc(name, nv, na=0, ns=102):
    off = (nv + 3) // 4 * 4
    tot = off + na if na else nv
    return f""".p2align 6
.amdhsa_kernel {name}
  .amdhsa_next_free_vgpr {tot}
  .amdhsa_next_free_sgpr {ns}
  .amdhsa_accum_offset {off}
  .amdhsa_group_segment_fixed_size 0
  .amdhsa_kernarg_size 96
  .amdhsa_user_sgpr_count 2
  .amdhsa_user_sgpr_kernarg_segment_ptr 1
  .amdhsa_system_sgpr_workgroup_id_x 1
.end_amdhsa_kernel
"""
S_, D_, H_, DH, F_ = 2048, 448, 16, 28, 1792
def _al(x): return (x + 4095) // 4096 * 4096
WS = {}
_o = 0
for nm, sz in [("WGU", 112*28*1024), ("CSF", 112*1024), ("WD", 14*112*1024), ("WO", 14*32*1024),
               ("Q0", S_*D_*2+64), ("Q1", S_*D_*2+64), ("KV0", 64*4096), ("KV1", 64*4096),
               ("KM0", 256), ("KM1", 256), ("O0", 64*32*1024), ("O1", 64*32*1024),
               ("X1", 64*28*1024), ("X2", 64*28*1024), ("X3", 64*28*1024),
               ("ST0", 64*14*256), ("ST1", 64*14*256), ("H0", 64*112*1024), ("H1", 64*112*1024),
               ("FLG", 65536)]:
    WS[nm] = (_o, sz); _o += _al(sz)
WS_END = _o
KA = dict(x=0, wq=8, wk=16, wv=24, wo=32, bx=40, wg=48, wu=56, wd=64, out=72, dbg=80, ws=88)

class Ctr:
    def __init__(self, a, kind, cap):
        self.a, self.kind, self.cap, self.q = a, kind, cap, []
    def issue(self, tag, text):
        self.a(text); self.q.append(tag)
        assert len(self.q) <= self.cap, (self.kind, len(self.q), tag)
    def need(self, *tags):
        idx = max([i for i, t in enumerate(self.q) if t in tags], default=-1)
        return None if idx < 0 else len(self.q) - idx - 1
    def wait(self, *tags):
        n = self.need(*tags)
        if n is None: return
        self.a(f"s_waitcnt {self.kind}({n})")
        self.q = self.q[len(self.q) - n:] if n else []
    def drain(self):
        self.a(f"s_waitcnt {self.kind}(0)"); self.q = []
```

```python
from asmlib import *
from k_qkv import f2u
QB, KVB, SB, EB, PB, OB = 16, 48, 112, 144, 160, 168
ATT_NV = OB + 64
ATT_LDS = 49152
TBOUND = 60.0
def mf(d, x, y, c): return f"v_mfma_f32_32x32x16_bf16 v[{d}:{d+15}], v[{x}:{x+3}], v[{y}:{y+3}], " + (c if isinstance(c, str) else f"v[{c}:{c+15}]")
def att_body(a, pfx, layer, hook=None):
    L = layer
    a(f"""
    s_load_dwordx2 s[12:13], s[0:1], {KA['ws']}
    v_lshrrev_b32 v1, 6, v0
    v_and_b32 v2, 63, v0
    s_and_b32 s24, s2, 7
    v_readfirstlane_b32 s3, v1
    s_lshr_b32 s25, s2, 3
    s_and_b32 s26, s25, 3
    s_lshr_b32 s25, s25, 2
    s_lshl_b32 s24, s24, 3
    s_add_u32 s24, s24, s25
    v_and_b32 v3, 31, v2
    v_lshrrev_b32 v4, 5, v2
    v_lshlrev_b32 v9, 4, v2
    v_lshlrev_b32 v8, 2, v2
    v_mul_u32_u24 v5, {D_*2}, v3
    v_lshl_add_u32 v5, v4, 3, v5
    s_lshl_b32 s27, s3, 16
    s_add_u32 s27, s27, {WS['KV%d'%L][0]}
    s_waitcnt lgkmcnt(0)
    s_add_u32 s20, s12, s27
    s_addc_u32 s21, s13, 0
    s_mov_b32 s22, 65536
    s_mov_b32 s23, 0x20000
    """)
    a.srd(16, 12, WS_END)
    a(f"""
    s_mov_b32 s28, {WS['KM%d'%L][0]}
    buffer_load_dword v10, v8, s[16:19], s28 offen
    s_mul_i32 s27, s24, {32*D_*2}
    s_add_u32 s27, s27, {WS['Q%d'%L][0]}
    """)
    for i in range(4):
        a(f"""s_add_u32 s28, s3, {i}
        s_and_b32 s28, s28, 3
        s_lshl_b32 s29, s26, 2
        s_add_u32 s28, s28, s29
        s_mul_i32 s28, s28, 56
        s_add_u32 s28, s28, s27""")
        for p in range(4):
            a(f"buffer_load_dwordx2 v[{QB+8*i+2*p}:{QB+8*i+2*p+1}], v5, s[16:19], s28 offen offset:{16*p}")
    def kvload(slot, sreg):
        for p in range(4):
            r = KVB + 16*slot + 4*p
            a(f"buffer_load_dwordx4 v[{r}:{r+3}], v9, s[20:23], {sreg} offen offset:{1024*p}")
    a("s_mov_b32 s30, 4096\ns_mov_b32 s31, 8192")
    kvload(0, "0"); kvload(1, "s30"); kvload(2, "s31")
    a("s_mov_b32 s30, 12288")
    for r in range(64): a(f"v_mov_b32 v{OB+r}, 0")
    for r in range(4): a(f"v_mov_b32 v{KVB+60+r}, 0\nv_mov_b32 v{EB+12+r}, 0")
    a(f"v_mov_b32 v{PB+4}, 0\nv_mov_b32 v{PB+5}, 0\nv_cmp_eq_u32 s[34:35], 1, v4")
    a("s_waitcnt vmcnt(28)")
    for sh in (1, 2, 4, 8):
        a(f"s_nop 1\nv_max_f32_dpp v10, v10, v10 row_shr:{sh} row_mask:0xf bank_mask:0xf")
    a("""s_nop 1
    v_readlane_b32 s36, v10, 15
    v_readlane_b32 s37, v10, 31
    v_readlane_b32 s38, v10, 47
    v_readlane_b32 s39, v10, 63
    s_waitcnt vmcnt(12)
    s_max_u32 s36, s36, s37
    s_max_u32 s38, s38, s39
    s_max_u32 s36, s36, s38""")
    for i in range(4):
        a(f"v_cndmask_b32 v{QB+8*i+6}, v{QB+8*i+6}, 0, s[34:35]\nv_cndmask_b32 v{QB+8*i+7}, v{QB+8*i+7}, 0, s[34:35]")
    for i in range(4):
        for r in range(8):
            a(f"v_dot2_f32_bf16 v{SB+i}, v{QB+8*i+r}, v{QB+8*i+r}, {'0' if r==0 else 'v%d'%(SB+i)}")
    a("s_nop 2")
    for i in range(4): a(f"v_mov_b32 v{SB+4+i}, v{SB+i}")
    a("s_nop 1")
    for i in range(4): a(f"v_permlane32_swap_b32 v{SB+i}, v{SB+4+i}")
    a("s_nop 1")
    for i in range(4): a(f"v_add_f32 v{SB+i}, v{SB+i}, v{SB+4+i}")
    a(f"""
    v_max_f32 v{SB}, v{SB}, v{SB+1}
    v_max3_f32 v{SB}, v{SB}, v{SB+2}, v{SB+3}
    v_mul_f32 v{SB}, s36, v{SB}
    v_cmp_nge_f32 vcc, {hex(f2u(TBOUND*TBOUND))}, v{SB}
    s_nop 4
    s_cbranch_vccz {pfx}_go
    """)
    for i in range(4): a(f"v_mov_b32 v{PB+0 if False else EB+i}, 0xff800000")
    a(f"s_mov_b32 s36, 0\n{pfx}_mx:")
    T = KVB + 48
    a(f"""buffer_load_dwordx4 v[{T}:{T+3}], v9, s[20:23], s36 offen
    buffer_load_dwordx4 v[{T+4}:{T+7}], v9, s[20:23], s36 offen offset:1024
    s_waitcnt vmcnt(0)""")
    for i in range(4):
        a(mf(SB, T, QB+8*i, "0")); a(mf(SB, T+4, QB+8*i+4, SB))
        a("s_nop 15")
        for r in range(8): a(f"v_max3_f32 v{EB+i}, v{EB+i}, v{SB+2*r}, v{SB+2*r+1}")
    a(f"""s_add_u32 s36, s36, 4096
    s_cmp_lt_u32 s36, 65536
    s_cbranch_scc1 {pfx}_mx""")
    for i in range(4):
        a(f"""s_add_u32 s28, s3, {i}
        s_and_b32 s28, s28, 3
        s_lshl_b32 s28, s28, 10
        s_lshl_b32 s29, s3, 8
        s_add_u32 s29, s29, s28
        v_add_u32 v6, s29, v8
        ds_write_b32 v6, v{EB+i}
        v_lshl_add_u32 v{EB+4+i}, v3, 2, s28""")
    a("s_waitcnt lgkmcnt(0)\ns_barrier")
    for i in range(4):
        for p in range(8): a(f"ds_read_b32 v{SB+p}, v{EB+4+i} offset:{128*p}")
        a("s_waitcnt lgkmcnt(0)")
        a(f"""v_max3_f32 v{SB}, v{SB}, v{SB+1}, v{SB+2}
        v_max3_f32 v{SB}, v{SB}, v{SB+3}, v{SB+4}
        v_max3_f32 v{SB}, v{SB}, v{SB+5}, v{SB+6}
        v_max_f32 v{SB}, v{SB}, v{SB+7}
        v_sub_f32 v{SB}, 0, v{SB}
        v_cvt_pk_bf16_f32 v{SB+1}, v{SB}, 0
        v_lshlrev_b32 v{SB+2}, 16, v{SB+1}
        v_sub_f32 v{SB+2}, v{SB}, v{SB+2}
        v_cvt_pk_bf16_f32 v{SB+1}, v{SB}, v{SB+2}
        v_and_b32 v{SB+3}, 0xffff0000, v{SB+1}
        v_sub_f32 v{SB+2}, v{SB+2}, v{SB+3}
        v_cvt_pk_bf16_f32 v{SB+2}, v{SB+2}, 0
        v_cndmask_b32 v{QB+8*i+6}, v{QB+8*i+6}, v{SB+1}, s[34:35]
        v_cndmask_b32 v{QB+8*i+7}, v{QB+8*i+7}, v{SB+2}, s[34:35]""")
    a("s_barrier")
    a(f"{pfx}_go:")
    a("s_waitcnt vmcnt(8)")
    a(mf(SB, KVB, QB, "0")); a(mf(SB, KVB+4, QB+4, SB))
    a(f"s_mov_b32 s31, 4\ns_nop 7\ns_nop 3\n.p2align 3\n{pfx}_loop:")
    def e(i, sb): a(f"v_exp_f32 v{EB+i}, v{sb+i}")
    def c(p): a(f"v_cvt_pk_bf16_f32 v{PB+p}, v{EB+2*p}, v{EB+2*p+1}")
    for kt in range(4):
        for qi in range(4):
            u = 4*kt + qi
            sc, sn = SB + 16*(u % 2), SB + 16*((u+1) % 2)
            nk, nq = (kt, qi+1) if qi < 3 else ((kt+1) % 4, 0)
            pk, pq = (kt, qi-1) if qi > 0 else ((kt-1) % 4, 3)
            Kn = KVB + 16*nk
            if qi == 3: a("s_waitcnt vmcnt(8)")
            a(mf(sn, Kn, QB+8*nq, "0"))
            e(0, sc); c(6); e(1, sc); c(7); e(2, sc); e(3, sc)
            a(mf(sn, Kn+4, QB+8*nq+4, sn))
            e(4, sc); c(0); e(5, sc); c(1); e(6, sc); e(7, sc)
            a(mf(OB+16*pq, KVB+16*pk+12, PB+4, OB+16*pq))
            if qi == 1:
                kvload((kt+3) % 4, "s30"); a("s_add_u32 s30, s30, 4096")
            e(8, sc); c(2); e(9, sc); c(3); e(10, sc); e(11, sc)
            a(mf(OB+16*qi, KVB+16*kt+8, PB, OB+16*qi))
            e(12, sc); c(4); e(13, sc); c(5); e(14, sc); e(15, sc)
    a(f"""s_sub_u32 s31, s31, 1
    s_cmp_lg_u32 s31, 0
    s_cbranch_scc1 {pfx}_loop""")
    c(6); c(7)
    for i in range(1, 4):
        a(f"""s_add_u32 s28, s3, {i}
        s_and_b32 s28, s28, 3
        s_mul_i32 s28, s28, 12288
        v_add_u32 v{10+i}, s28, v9""")
    a(mf(OB+48, KVB+48+12, PB+4, OB+48))
    a("s_mul_i32 s28, s3, 12288\nv_add_u32 v10, s28, v9")
    for i in range(1, 4):
        if i == 3: a("s_nop 7")
        for p in range(4):
            r = OB + 16*i + 4*p
            a(f"ds_write_b128 v{10+i}, v[{r}:{r+3}] offset:{(i-1)*4096+p*1024}")
    a(f"""
    s_lshl_b32 s27, s24, 5
    s_lshl_b32 s28, s26, 2
    s_add_u32 s28, s28, s3
    s_lshl_b32 s28, s28, 1
    s_add_u32 s27, s27, s28
    s_lshl_b32 s27, s27, 10
    s_add_u32 s27, s27, {WS['O%d'%L][0]}
    s_waitcnt lgkmcnt(0)
    s_barrier""")
    for i in range(12):
        r = OB + 16 + 4*i
        a(f"ds_read_b128 v[{r}:{r+3}], v10 offset:{i*1024}")
    for i in range(3):
        a.wait(lgkm=8-4*i)
        for r in range(16): a(f"v_add_f32 v{OB+r}, v{OB+r}, v{OB+16+16*i+r}")
    a(f"""v_mov_b32 v11, v{OB+12}
    v_mov_b32 v12, v{OB+12}
    s_nop 1
    v_permlane32_swap_b32 v11, v12
    s_nop 1
    v_rcp_f32 v12, v12
    s_nop 0""")
    for r in range(16): a(f"v_mul_f32 v{OB+r}, v{OB+r}, v12")
    for r in range(8): a(f"v_cvt_pk_bf16_f32 v{PB+r}, v{OB+2*r}, v{OB+2*r+1}")
    a(f"""v_cndmask_b32 v{PB+6}, v{PB+6}, 0, s[34:35]
    v_cndmask_b32 v{PB+7}, v{PB+7}, 0, s[34:35]
    buffer_store_dwordx4 v[{PB}:{PB+3}], v9, s[16:19], s27 offen
    buffer_store_dwordx4 v[{PB+4}:{PB+7}], v9, s[16:19], s27 offen offset:1024""")

def att_kernel(layer):
    nm = f"att{layer}_kernel"
    a = A()
    a.raw(kernel_head(nm))
    a(f"s_cmp_ge_u32 s2, 256\ns_cbranch_scc1 {nm}_exit")
    att_body(a, f"att{layer}", layer)
    a(f"{nm}_exit:\ns_endpgm")
    return a.text(), kernel_desc(nm, ATT_NV), (nm, 256, 256, ATT_LDS)
```

```python
from asmlib import *
GR_LDS = 49152
NSLOT = 12
def gr_body(a, pfx, kind, layer):
    L = layer
    KS = 32 if kind == 'o' else 112
    kq = KS // 4
    Wb = WS['WO' if kind == 'o' else 'WD'][0]
    Bb = WS[('O%d' if kind == 'o' else 'H%d') % L][0]
    res_rm = (kind == 'o' and L == 0)
    out_rm = (kind == 'd' and L == 1)
    resb = {('o', 1): 'X2', ('d', 0): 'X1', ('d', 1): 'X3'}.get((kind, L))
    outb = {('o', 0): 'X1', ('o', 1): 'X3', ('d', 0): 'X2'}.get((kind, L))
    a(f"""
    s_load_dwordx2 s[12:13], s[0:1], {KA['ws']}
    s_load_dwordx2 s[4:5], s[0:1], {KA['x'] if res_rm else KA['out']}
    v_lshrrev_b32 v1, 6, v0
    v_and_b32 v2, 63, v0
    s_and_b32 s24, s2, 7
    v_readfirstlane_b32 s3, v1
    s_lshr_b32 s25, s2, 3
    s_mul_i32 s26, s25, 9363
    s_lshr_b32 s26, s26, 16
    s_mul_i32 s27, s26, 7
    s_sub_u32 s25, s25, s27
    s_lshl_b32 s24, s24, 2
    s_add_u32 s24, s24, s26
    v_and_b32 v3, 31, v2
    v_lshrrev_b32 v4, 5, v2
    v_lshlrev_b32 v9, 4, v2
    s_lshr_b32 s26, s3, 1
    s_and_b32 s27, s3, 1
    s_lshl_b32 s24, s24, 1
    s_lshl_b32 s25, s25, 1
    s_add_u32 s24, s24, s26
    s_add_u32 s25, s25, s27
    s_xor_b32 s26, s24, 1
    s_xor_b32 s27, s25, 1
    s_mul_i32 s36, s3, {kq}
    s_waitcnt lgkmcnt(0)
    """)
    a.srd(16, 12, WS_END)
    if res_rm or out_rm:
        a.srd(20, 4, S_*D_*2)
        a(f"""v_mul_u32_u24 v5, {D_*2}, v3
        v_lshl_add_u32 v5, v4, 3, v5
        s_mul_i32 s37, s24, {32*D_*2}
        s_lshl_b32 s38, s25, 6
        s_add_u32 s37, s37, s38""")
    for d, src, base in ((28, 25, Wb), (29, 27, Wb), (30, 24, Bb), (31, 26, Bb)):
        a(f"""s_mul_i32 s{d}, s{src}, {KS}
        s_add_u32 s{d}, s{d}, s36
        s_lshl_b32 s{d}, s{d}, 10
        s_add_u32 s{d}, s{d}, {base}""")
    FB = 32
    def ld(k):
        r = FB + 16*(k % NSLOT)
        for p in (0, 2, 1, 3):
            a(f"buffer_load_dwordx4 v[{r+4*p}:{r+4*p+3}], v9, s[16:19], s{28+p} offen offset:{1024*(k%4)}")
        if k % 4 == 3:
            for p in range(4): a(f"s_add_u32 s{28+p}, s{28+p}, 4096")
    npre = min(kq, NSLOT)
    for k in range(npre): ld(k)
    a(f"""s_mul_i32 s38, s24, 28
    s_lshl_b32 s39, s25, 1
    s_add_u32 s38, s38, s39
    s_lshl_b32 s38, s38, 10""")
    def resld():
        if res_rm:
            for g in range(4): a(f"buffer_load_dwordx2 v[{16+2*g}:{17+2*g}], v5, s[20:23], s37 offen offset:{16*g}")
            return 4
        a(f"s_add_u32 s39, s38, {WS[resb][0]}")
        for j in range(2): a(f"buffer_load_dwordx4 v[{16+4*j}:{19+4*j}], v9, s[16:19], s39 offen offset:{1024*j}")
        return 2
    issued = npre; nres = 0; res_at = None
    for k in range(kq):
        if res_at is None and issued == kq:
            nres = resld(); res_at = k
        a.wait(vm=4*(issued - k - 1) + nres)
        r = FB + 16*(k % NSLOT)
        for ib in range(2):
            for ia in range(2):
                t = 16*(2*ib + ia)
                a(f"v_mfma_f32_32x32x16_bf16 a[{t}:{t+15}], v[{r+4*ia}:{r+4*ia+3}], v[{r+8+4*ib}:{r+11+4*ib}], {'0' if k==0 else 'a[%d:%d]'%(t,t+15)}")
        if issued < kq and k >= 1:
            ld(issued); issued += 1
    for i in range(1, 4):
        a(f"""s_xor_b32 s39, s3, {i}
        s_mul_i32 s39, s39, 12288
        v_add_u32 v{10+i}, s39, v9""")
    a("s_mul_i32 s39, s3, 12288\nv_add_u32 v10, s39, v9\ns_nop 1")
    for i in range(1, 4):
        if i == 3: a("s_nop 3")
        for p in range(4):
            r = 16*i + 4*p
            a(f"ds_write_b128 v{10+i}, a[{r}:{r+3}] offset:{(i-1)*4096+p*1024}")
    for r in range(16): a(f"v_accvgpr_read_b32 v{FB+r}, a{r}")
    a("s_waitcnt vmcnt(0)")
    for r in range(8):
        a(f"""v_lshlrev_b32 v24, 16, v{16+r}
        v_and_b32 v25, 0xffff0000, v{16+r}
        v_add_f32 v{FB+2*r}, v{FB+2*r}, v24
        v_add_f32 v{FB+2*r+1}, v{FB+2*r+1}, v25""")
    a("s_waitcnt lgkmcnt(0)\ns_barrier")
    for i in range(12):
        r = FB + 16 + 4*i
        a(f"ds_read_b128 v[{r}:{r+3}], v10 offset:{i*1024}")
    for i in range(3):
        a.wait(lgkm=8-4*i)
        for r in range(16): a(f"v_add_f32 v{FB+r}, v{FB+r}, v{FB+16+16*i+r}")
    for r in range(8): a(f"v_cvt_pk_bf16_f32 v{16+r}, v{FB+2*r}, v{FB+2*r+1}")
    if out_rm:
        for g in range(4): a(f"buffer_store_dwordx2 v[{16+2*g}:{17+2*g}], v5, s[20:23], s37 offen offset:{16*g}")
    else:
        a(f"s_add_u32 s39, s38, {WS[outb][0]}")
        for j in range(2): a(f"buffer_store_dwordx4 v[{16+4*j}:{19+4*j}], v9, s[16:19], s39 offen offset:{1024*j}")
    if kind == 'o':
        a(f"v_add_f32 v24, v{FB}, v{FB+1}\nv_mul_f32 v25, v{FB}, v{FB}\nv_fmac_f32 v25, v{FB+1}, v{FB+1}")
        for r in range(2, 16): a(f"v_add_f32 v24, v24, v{FB+r}\nv_fmac_f32 v25, v{FB+r}, v{FB+r}")
        a(f"""v_mov_b32 v26, v24
        v_mov_b32 v27, v25
        s_mul_i32 s38, s24, 14
        s_add_u32 s38, s38, s25
        v_permlane32_swap_b32 v24, v26
        v_permlane32_swap_b32 v25, v27
        s_lshl_b32 s38, s38, 8
        s_add_u32 s38, s38, {WS['ST%d'%L][0]}
        v_add_f32 v24, v24, v26
        v_add_f32 v25, v25, v27
        v_lshlrev_b32 v6, 3, v3
        buffer_store_dwordx2 v[24:25], v6, s[16:19], s38 offen""")

def gr_kernel(kind, layer):
    nm = f"gr{kind}{layer}_kernel"
    a = A()
    a.raw(kernel_head(nm))
    a(f"s_cmp_ge_u32 s2, 224\ns_cbranch_scc1 {nm}_exit")
    gr_body(a, f"gr{kind}{layer}", kind, layer)
    a(f"{nm}_exit:\ns_endpgm")
    return a.text(), kernel_desc(nm, 32+16*NSLOT, 64), (nm, 224, 256, GR_LDS)
```

```python
from asmlib import *
from k_qkv import f2u
import math
GU_LDS = 5*28672
ACC, WF, CS, TMP = 16, 128, 160, 192
NA = 3
def gu_body(a, pfx, layer):
    L = layer
    Xb = WS['X1' if L == 0 else 'X3'][0]
    vm = Ctr(a, "vmcnt", 63); lg = Ctr(a, "lgkmcnt", 15)
    a(f"""
    s_load_dwordx2 s[12:13], s[0:1], {KA['ws']}
    v_lshrrev_b32 v1, 6, v0
    v_and_b32 v2, 63, v0
    s_and_b32 s24, s2, 3
    v_readfirstlane_b32 s3, v1
    s_lshl_b32 s24, s24, 2
    s_bfe_u32 s25, s2, 0x20003
    s_add_u32 s25, s25, s24
    s_bfe_u32 s24, s2, 0x10002
    s_lshl_b32 s24, s24, 3
    s_lshr_b32 s26, s2, 5
    s_add_u32 s24, s24, s26
    s_lshl_b32 s24, s24, 2
    s_add_u32 s24, s24, s3
    v_and_b32 v3, 31, v2
    v_lshrrev_b32 v4, 5, v2
    v_lshlrev_b32 v9, 4, v2
    s_mul_i32 s26, s24, {28*1024}
    s_add_u32 s26, s26, {Xb}
    s_mul_i32 s27, s25, {7*28*1024}
    s_lshl_b32 s28, s3, 10
    s_add_u32 s27, s27, s28
    s_add_u32 s27, s27, {WS['WGU'][0]}
    s_waitcnt lgkmcnt(0)
    """)
    a.srd(16, 12, WS_END)
    def dma(t, i):
        slot = t % 5
        a(f"s_add_u32 m0, s28, {slot*28672 + i*4096}\ns_add_u32 s29, s27, {t*28672 + i*4096}")
        vm.issue(("w", t, i), "buffer_load_dwordx4 v9, s[16:19], s29 offen lds")
    for i in range(7):
        for t in range(NA):
            dma(t, i)
            if t == 0:
                for p in range(4):
                    vm.issue(("x", i), f"buffer_load_dwordx4 a[{16*i+4*p}:{16*i+4*p+3}], v9, s[16:19], s26 offen offset:{1024*p}")
                a("s_add_u32 s26, s26, 4096")
    a(f"""v_mov_b32 v10, v9
    v_add_u32 v11, {2*28672}, v9
    v_add_u32 v12, {4*28672}, v9
    v_mul_u32_u24 v5, {7*256}, v4
    v_lshl_add_u32 v5, v3, 3, v5
    s_mul_i32 s30, s24, {14*256}
    s_add_u32 s30, s30, {WS['ST%d'%L][0]}
    s_mul_i32 s31, s25, {7*1024}
    s_add_u32 s31, s31, {WS['CSF'][0]}
    s_add_u32 s32, s31, 4096
    s_mul_i32 s33, s24, 112
    s_mul_i32 s34, s25, 7
    s_add_u32 s33, s33, s34
    s_lshl_b32 s33, s33, 10
    s_add_u32 s33, s33, {WS['H%d'%L][0]}
    s_add_u32 s34, s33, 4096""")
    def rd(t, ks, reg):
        slot = t % 5
        lg.issue(("r", t, ks), f"ds_read_b128 v[{reg}:{reg+3}], v{10+slot//2} offset:{(slot%2)*28672 + ks*1024}")
    def mfma(t, reg, ks):
        d = ACC + 16*t
        a(f"v_mfma_f32_32x32x16_bf16 v[{d}:{d+15}], v[{reg}:{reg+3}], a[{4*ks}:{4*ks+3}], {'0' if ks==0 else 'v[%d:%d]'%(d,d+15)}")
    def csmfma(t):
        d = ACC + 16*t
        a(f"v_mfma_f32_32x32x16_bf16 v[{d}:{d+15}], v[{CS+4*t}:{CS+4*t+3}], v[{TMP}:{TMP+3}], v[{d}:{d+15}]")
    SIG, C1 = TMP+4, TMP+5
    def stats_ops():
        o = []
        S0 = TMP + 8
        for i in range(1, 7): o += [f"v_add_f32 v{S0}, v{S0}, v{S0+2*i}", f"v_add_f32 v{S0+1}, v{S0+1}, v{S0+2*i+1}"]
        o += [f"v_mov_b32 v{S0+2}, v{S0}", f"v_mov_b32 v{S0+3}, v{S0+1}", "s_nop 1",
              f"v_permlane32_swap_b32 v{S0}, v{S0+2}", f"v_permlane32_swap_b32 v{S0+1}, v{S0+3}", "s_nop 1",
              f"v_add_f32 v{S0}, v{S0}, v{S0+2}", f"v_add_f32 v{S0+1}, v{S0+1}, v{S0+3}",
              f"v_mul_f32 v{S0}, {hex(f2u(-1.0/D_))}, v{S0}", f"v_mul_f32 v{S0+1}, {hex(f2u(1.0/D_))}, v{S0+1}",
              f"v_fma_f32 v{S0+1}, -v{S0}, v{S0}, v{S0+1}", f"v_max_f32 v{S0+1}, 0, v{S0+1}",
              f"v_add_f32 v{S0+1}, {hex(f2u(1e-5))}, v{S0+1}",
              f"v_cvt_pk_bf16_f32 v{TMP}, v{S0}, v{S0}", f"v_rsq_f32 v{C1}, v{S0+1}",
              f"v_and_b32 v{S0+2}, 0xffff0000, v{TMP}", f"v_mul_f32 v{SIG}, v{S0+1}, v{C1}",
              f"v_sub_f32 v{S0+2}, v{S0}, v{S0+2}", f"v_mul_f32 v{C1}, {hex(f2u(-math.log2(math.e)))}, v{C1}",
              f"v_cvt_pk_bf16_f32 v{TMP+1}, v{S0+2}, 0", f"v_mov_b32 v{TMP+2}, v{TMP}", f"v_mov_b32 v{TMP+3}, v{TMP+1}"]
        return [(x, 4) for x in o]
    def epi_ops(t):
        d = ACC + 16*t; E = TMP + 24; P = TMP + 32 + 4*(t % 2)
        o = []
        for half in range(2):
            js = range(4*half, 4*half+4)
            o += [(f"v_mul_f32 v{E+j}, v{C1}, v{d+j}", 4) for j in js]
            o += [(f"v_exp_f32 v{E+j}, v{E+j}", 8) for j in js]
            o += [(f"v_fma_f32 v{E+j}, v{E+j}, v{SIG}, v{SIG}", 4) for j in js]
            o += [(f"v_rcp_f32 v{E+j}, v{E+j}", 8) for j in js]
            o += [(f"v_mul_f32 v{E+j}, v{E+j}, v{d+8+j}", 4) for j in js]
            o += [(f"v_cvt_pk_bf16_f32 v{P+2*half+q}, v{E+4*half+2*q}, v{E+4*half+2*q+1}", 4) for q in range(2)]
        o += [(("st", f"buffer_store_dwordx4 v[{P}:{P+3}], v9, s[16:19], s{33 if t<4 else 34} offen offset:{1024*(t%4)}"), 4)]
        return o
    q = []
    def fill(budget):
        while q and budget >= q[0][1]:
            op, c = q.pop(0); budget -= c
            if isinstance(op, tuple): vm.issue("st", op[1])
            else: a(op)
    vm.wait(("w", NA-1, 0)); a("s_barrier")
    for i in range(7): vm.issue("stat", f"buffer_load_dwordx2 v[{TMP+8+2*i}:{TMP+9+2*i}], v5, s[16:19], s30 offen offset:{256*i}")
    for t in range(7): vm.issue("cs", f"buffer_load_dwordx4 v[{CS+4*t}:{CS+4*t+3}], v9, s[16:19], s{31 if t<4 else 32} offen offset:{1024*(t%4)}")
    for t in range(NA): rd(t, 0, WF + 4*t)
    for ks in range(28):
        cur, nxt = WF + 16*(ks % 2), WF + 16*((ks+1) % 2)
        i = ks // 4
        if ks % 4 == 3:
            if ks < 27:
                vm.wait(("w", NA-1, i+1)); a("s_barrier")
            else:
                vm.wait(("w", NA, 6)); lg.drain(); a("s_barrier")
        if ks == 20:
            vm.wait("stat"); q += stats_ops()
        for t in range(NA):
            lg.wait(("r", t, ks))
            mfma(t, cur + 4*t, ks)
            if ks < 27: rd(t, ks+1, nxt + 4*t)
            elif t < 3: rd(NA, t, WF + 4*t)
            if ks % 4 == 1 and t < 2: dma(NA + t, i)
            fill(16)
    assert not q
    vm.wait("cs")
    a("s_nop 0")
    for t in range(NA): csmfma(t)
    pend = list(range(NA))
    n = 0
    seq = [(t, ks) for t in range(NA, 7) for ks in range(28)]
    gap = 0; ready = {t: 2 for t in range(NA)}
    for n, (t, ks) in enumerate(seq):
        if n + 3 < len(seq):
            t2, k2 = seq[n+3]
            if k2 == 0:
                vm.wait(("w", t2, 6)); a("s_barrier")
        lg.wait(("r", t, ks))
        mfma(t, WF + 4*(n % 4), ks)
        if n + 3 < len(seq): rd(t2, k2, WF + 4*((n+3) % 4))
        if t == NA and ks < 14 and NA + 2 + ks // 7 < 7 and 5 + ks//7 < 7: dma(5 + ks // 7, ks % 7)
        while pend and ready[pend[0]] <= gap: q += epi_ops(pend.pop(0))
        fill(20 if not (t == NA and ks < 14) else 12)
        gap += 1
        if ks == 27:
            csmfma(t); pend.append(t); ready[t] = gap + 4
            fill(16)
    a("s_nop 7\ns_nop 3")
    while pend: q += epi_ops(pend.pop(0))
    fill(10**9)

def gu_kernel(layer):
    nm = f"gu{layer}_kernel"
    a = A()
    a.raw(kernel_head(nm))
    a(f"s_cmp_ge_u32 s2, 256\ns_cbranch_scc1 {nm}_exit")
    gu_body(a, f"gu{layer}", layer)
    a(f"{nm}_exit:\ns_endpgm")
    return a.text(), kernel_desc(nm, TMP+40, 112), (nm, 256, 256, GU_LDS)
```

```python
from asmlib import *
NJOB = 238
def prep_body(a, pfx):
    a(f"""
    s_load_dwordx2 s[4:5], s[0:1], {KA['wo']}
    s_load_dwordx4 s[8:11], s[0:1], {KA['wg']}
    s_load_dwordx2 s[6:7], s[0:1], {KA['wd']}
    s_load_dwordx2 s[12:13], s[0:1], {KA['ws']}
    v_lshrrev_b32 v1, 6, v0
    v_and_b32 v2, 63, v0
    s_nop 0
    v_readfirstlane_b32 s3, v1
    v_lshrrev_b32 v3, 3, v2
    v_and_b32 v4, 7, v2
    v_lshlrev_b32 v4, 4, v4
    v_bfe_u32 v5, v2, 4, 1
    v_lshrrev_b32 v6, 5, v2
    v_bfe_u32 v7, v2, 2, 2
    v_and_b32 v8, 3, v2
    v_lshl_add_u32 v6, v6, 2, v7
    v_lshlrev_b32 v6, 7, v6
    v_lshl_add_u32 v6, v8, 3, v6
    v_lshlrev_b32 v9, 4, v2
    s_waitcnt lgkmcnt(0)
    """)
    a.srd(16, 12, WS['Q0'][0])
    a(f"s_cmp_ge_u32 s2, 112\ns_cbranch_scc1 {pfx}_b")
    a(f"""
    s_lshr_b32 s24, s2, 2
    s_and_b32 s25, s2, 3
    s_cmp_ge_u32 s3, 2
    s_cselect_b32 s20, s10, s8
    s_cselect_b32 s21, s11, s9
    s_mov_b32 s22, {D_*F_*2}
    s_mov_b32 s23, 0x20000
    s_and_b32 s26, s3, 1
    s_mul_i32 s27, s25, 112
    s_mul_i32 s28, s26, 56
    s_add_u32 s27, s27, s28
    s_mul_i32 s27, s27, {F_*2}
    s_lshl_b32 s28, s24, 7
    s_add_u32 s27, s27, s28
    s_mul_i32 s28, s3, 7168
    s_mov_b32 m0, s28
    s_mov_b32 s29, {F_*2}
    v_mul_lo_u32 v10, v3, s29
    v_add_u32 v10, v10, v4
    """)
    for i in range(7):
        a(f"buffer_load_dwordx4 v10, s[20:23], s27 offen lds")
        if i < 6: a(f"s_add_u32 m0, m0, 1024\ns_add_u32 s27, s27, {8*F_*2}")
    a(f"""
    v_mul_u32_u24 v11, 14336, v5
    v_add_u32 v11, v11, v6
    s_lshl_b32 s28, s3, 5
    v_add_u32 v11, s28, v11
    s_lshl_b32 s26, s24, 2
    s_add_u32 s26, s26, s3
    s_mul_i32 s27, s26, 28
    s_mul_i32 s28, s25, 7
    s_add_u32 s27, s27, s28
    s_lshl_b32 s27, s27, 10
    s_add_u32 s27, s27, {WS['WGU'][0]}
    v_mov_b32 v12, 0
    s_waitcnt vmcnt(0)
    s_barrier
    """)
    for ks in range(7):
        a(f"ds_read_b64_tr_b16 v[{16+4*ks}:{17+4*ks}], v11 offset:{ks*2048}")
        a(f"ds_read_b64_tr_b16 v[{18+4*ks}:{19+4*ks}], v11 offset:{ks*2048+1024}")
    for ks in range(7):
        a.wait(lgkm=2*(6-ks))
        a(f"buffer_store_dwordx4 v[{16+4*ks}:{19+4*ks}], v9, s[16:19], s27 offen")
        a("s_add_u32 s27, s27, 1024")
        for r in range(4):
            a(f"""v_lshlrev_b32 v13, 16, v{16+4*ks+r}
            v_and_b32 v14, 0xffff0000, v{16+4*ks+r}
            v_add_f32 v12, v12, v13
            v_add_f32 v12, v12, v14""")
    a(f"""
    v_mov_b32 v13, v12
    s_nop 1
    v_permlane32_swap_b32 v12, v13
    s_nop 1
    v_add_f32 v12, v12, v13
    v_cvt_pk_bf16_f32 v13, v12, 0
    v_lshlrev_b32 v14, 16, v13
    v_sub_f32 v14, v12, v14
    v_cvt_pk_bf16_f32 v12, v12, v14
    v_and_b32 v15, 31, v2
    v_lshlrev_b32 v15, 4, v15
    s_lshl_b32 s26, s26, 10
    s_lshr_b32 s27, s25, 1
    s_lshl_b32 s27, s27, 9
    s_and_b32 s28, s25, 1
    s_lshl_b32 s28, s28, 3
    s_add_u32 s26, s26, s27
    s_add_u32 s26, s26, s28
    s_add_u32 s26, s26, {WS['CSF'][0]}
    buffer_store_dwordx2 v[12:13], v15, s[16:19], s26 offen
    s_branch {pfx}_end
    {pfx}_b:
    s_sub_u32 s24, s2, 112
    s_cmp_ge_u32 s24, 98
    s_cselect_b32 s20, s4, s6
    s_cselect_b32 s21, s5, s7
    s_mov_b32 s22, {F_*D_*2}
    s_cselect_b32 s22, {D_*D_*2}, s22
    s_cselect_b32 s30, 28, 32
    s_cselect_b32 s31, 32, 112
    s_mov_b32 s32, {WS['WD'][0]}
    s_cselect_b32 s32, {WS['WO'][0]}, s32
    s_cselect_b32 s33, 98, 0
    s_mov_b32 s23, 0x20000
    s_sub_u32 s24, s24, s33
    s_mul_i32 s25, s24, 9363
    s_lshr_b32 s25, s25, 16
    s_mul_i32 s26, s25, 7
    s_sub_u32 s24, s24, s26
    s_lshl_b32 s26, s25, 2
    s_add_u32 s26, s26, s3
    s_mul_i32 s27, s26, s30
    s_mul_i32 s27, s27, {D_*2}
    s_lshl_b32 s28, s24, 7
    s_add_u32 s27, s27, s28
    s_lshl_b32 s28, s3, 12
    s_mov_b32 m0, s28
    v_mul_u32_u24 v10, {D_*2}, v3
    v_add_u32 v10, v10, v4
    """)
    for i in range(4):
        a(f"buffer_load_dwordx4 v10, s[20:23], s27 offen lds")
        if i < 3: a(f"s_add_u32 m0, m0, 1024\ns_add_u32 s27, s27, {8*D_*2}")
    a(f"""
    v_lshl_add_u32 v11, v5, 5, v6
    v_add_u32 v11, s28, v11
    s_lshl_b32 s24, s24, 1
    s_mul_i32 s27, s24, s31
    s_lshl_b32 s26, s26, 1
    s_add_u32 s27, s27, s26
    s_lshl_b32 s27, s27, 10
    s_add_u32 s27, s27, s32
    s_lshl_b32 s31, s31, 10
    s_add_u32 s28, s27, s31
    s_waitcnt vmcnt(0)
    """)
    for t in range(2):
        for b in range(2):
            r = 16 + 8*t + 4*b
            a(f"ds_read_b64_tr_b16 v[{r}:{r+1}], v11 offset:{b*2048+t*64}")
            a(f"ds_read_b64_tr_b16 v[{r+2}:{r+3}], v11 offset:{b*2048+t*64+1024}")
    a.wait(lgkm=0)
    for t in range(2):
        for b in range(2):
            r = 16 + 8*t + 4*b
            a(f"buffer_store_dwordx4 v[{r}:{r+3}], v9, s[16:19], s{27+t} offen offset:{b*1024}")
    a(f"{pfx}_end:")

def prep_kernel():
    a = A()
    a.raw(kernel_head("prep_kernel"))
    a(f"s_cmp_ge_u32 s2, {NJOB}\ns_cbranch_scc1 prep_exit")
    prep_body(a, "prep")
    a("prep_exit:\ns_endpgm")
    return a.text(), kernel_desc("prep_kernel", 48), ("prep_kernel", NJOB, 256, 28672)
```

```python
from asmlib import *
import math, struct
def f2u(x): return struct.unpack("<I", struct.pack("<f", x))[0]
QSCALE = f2u(math.log2(math.e) / math.sqrt(DH))
LW, LX, LS = 0, 4*28672, 5*28672
QKV_LDS = LS + 1024
def qkv_body(a, pfx, layer):
    rowmajor = (layer == 0)
    a(f"""
    s_load_dwordx8 s[4:11], s[0:1], 0
    s_load_dwordx2 s[12:13], s[0:1], {KA['ws']}
    v_lshrrev_b32 v1, 6, v0
    v_and_b32 v2, 63, v0
    s_and_b32 s24, s2, 7
    v_readfirstlane_b32 s3, v1
    s_lshr_b32 s25, s2, 3
    s_and_b32 s26, s25, 3
    s_lshr_b32 s25, s25, 2
    s_lshl_b32 s24, s24, 3
    s_add_u32 s24, s24, s25
    v_and_b32 v3, 31, v2
    v_lshrrev_b32 v4, 5, v2
    v_lshlrev_b32 v9, 4, v2
    s_lshl_b32 s26, s26, 2
    s_add_u32 s26, s26, s3
    s_waitcnt lgkmcnt(0)
    """)
    a.srd(16, 12, WS_END)
    if rowmajor:
        a.srd(28, 4, S_*D_*2)
        a(f"""
        v_mul_u32_u24 v5, {D_*2}, v3
        v_lshl_add_u32 v5, v4, 4, v5
        s_mul_i32 s27, s24, {32*D_*2}
        s_mul_i32 s32, s3, {7*32}
        s_add_u32 s27, s27, s32
        """)
        for i in range(7):
            a(f"buffer_load_dwordx4 v[{32+4*i}:{35+4*i}], v5, s[28:31], s27 offen offset:{32*i}")
    else:
        a(f"""
        s_mul_i32 s27, s24, 28
        s_mul_i32 s32, s3, 7
        s_add_u32 s27, s27, s32
        s_lshl_b32 s27, s27, 10
        s_add_u32 s27, s27, {WS['X2'][0]}
        s_add_u32 s32, s27, 4096
        """)
        for i in range(7):
            a(f"buffer_load_dwordx4 v[{32+4*i}:{35+4*i}], v9, s[16:19], s{27 if i<4 else 32} offen offset:{1024*(i%4)}")
    a(f"""
    s_cmp_eq_u32 s26, 14
    s_cselect_b32 s20, s8, s6
    s_cselect_b32 s21, s9, s7
    s_cmp_eq_u32 s26, 15
    s_cselect_b32 s20, s10, s20
    s_cselect_b32 s21, s11, s21
    s_cmp_ge_u32 s26, 14
    s_mov_b32 s22, {D_*D_*2}
    s_cselect_b32 s22, {D_*DH*2}, s22
    s_cselect_b32 s33, {DH*2}, {D_*2}
    s_cselect_b32 s34, 0, s26
    s_mov_b32 s23, 0x20000
    s_lshl_b32 s34, s34, 6
    v_lshrrev_b32 v6, 2, v2
    v_and_b32 v7, 3, v2
    v_mul_lo_u32 v6, v6, s33
    v_lshl_add_u32 v6, v7, 4, v6
    s_lshl_b32 s33, s33, 4
    s_mul_i32 s35, s3, 28672
    s_mov_b32 m0, s35
    """)
    for i in range(28):
        a(f"buffer_load_dwordx4 v6, s[20:23], s34 offen lds")
        if i < 27: a(f"s_add_u32 m0, m0, 1024\ns_add_u32 s34, s34, s33")
    a(f"""
    v_bfe_u32 v10, v2, 2, 2
    v_lshl_add_u32 v10, v4, {3 if rowmajor else 2}, v10
    v_lshlrev_b32 v10, 6, v10
    v_bfe_u32 v11, v2, 4, 1
    v_lshl_add_u32 v10, v11, 5, v10
    v_lshl_add_u32 v10, v7, 3, v10
    v_add_u32 v10, s35, v10
    v_mov_b32 v12, 0
    v_mov_b32 v13, 0
    s_waitcnt vmcnt(28)
    """)
    for r in range(28):
        a(f"""v_lshlrev_b32 v{64+2*r}, 16, v{32+r}
        v_and_b32 v{65+2*r}, 0xffff0000, v{32+r}
        v_add_f32 v12, v12, v{64+2*r}
        v_fmac_f32 v13, v{64+2*r}, v{64+2*r}
        v_add_f32 v12, v12, v{65+2*r}
        v_fmac_f32 v13, v{65+2*r}, v{65+2*r}""")
    a(f"""
    s_lshl_b32 s36, s3, 9
    v_lshlrev_b32 v14, 3, v2
    s_add_u32 s36, s36, {LS - 1024}
    v_add_u32 v15, s36, v14
    ds_write_b64 v15, v[12:13]
    v_lshlrev_b32 v14, 3, v3
    v_add_u32 v14, {LS - 1024}, v14
    v_add_u32 v8, {LX}, v9
    s_waitcnt lgkmcnt(0)
    s_barrier
    """)
    for i in range(8):
        a(f"ds_read_b64 v[{16+2*i}:{17+2*i}], v14 offset:{256*i}")
    a("s_waitcnt lgkmcnt(0)\ns_barrier")
    for i in range(1, 8):
        a(f"v_add_f32 v16, v16, v{16+2*i}\nv_add_f32 v17, v17, v{17+2*i}")
    a(f"""
    v_mul_f32 v16, {hex(f2u(1.0/D_))}, v16
    v_mul_f32 v17, {hex(f2u(1.0/D_))}, v17
    v_fma_f32 v17, -v16, v16, v17
    v_max_f32 v17, 0, v17
    v_add_f32 v17, {hex(f2u(1e-5))}, v17
    v_rsq_f32 v17, v17
    s_mul_i32 s36, s3, 7168
    v_add_u32 v15, s36, v8
    v_mul_f32 v16, v16, v17
    """)
    for i in range(7):
        for r in range(4):
            q = 64 + 8*i + 2*r
            a(f"""v_fma_f32 v{q}, v{q}, v17, -v16
            v_fma_f32 v{q+1}, v{q+1}, v17, -v16
            v_cvt_pk_bf16_f32 v{32+4*i+r}, v{q}, v{q+1}""")
        a(f"ds_write_b128 v15, v[{32+4*i}:{35+4*i}] offset:{1024*i}")
    a("s_waitcnt vmcnt(0) lgkmcnt(0)\ns_barrier")
    second = 256 if rowmajor else 512
    def rd(ks):
        j = 32 + 8*(ks % 4)
        a(f"""ds_read_b64_tr_b16 v[{j}:{j+1}], v10 offset:{ks*1024}
        ds_read_b64_tr_b16 v[{j+2}:{j+3}], v10 offset:{ks*1024+second}
        ds_read_b128 v[{j+4}:{j+7}], v8 offset:{ks*1024}""")
    def loop(swap):
        for ks in range(3): rd(ks)
        for ks in range(28):
            if ks + 3 < 28: rd(ks + 3)
            a.wait(lgkm=3*min(3, 27-ks))
            j = 32 + 8*(ks % 4)
            x, y = (f"v[{j+4}:{j+7}]", f"v[{j}:{j+3}]") if swap else (f"v[{j}:{j+3}]", f"v[{j+4}:{j+7}]")
            a(f"v_mfma_f32_32x32x16_bf16 v[64:79], {x}, {y}, {'0' if ks==0 else 'v[64:79]'}")
    L = layer
    a(f"s_cmp_eq_u32 s26, 15\ns_cbranch_scc1 {pfx}_v")
    loop(False)
    a(f"s_cmp_eq_u32 s26, 14\ns_cbranch_scc1 {pfx}_k")
    a(f"""
    v_mul_u32_u24 v5, {D_*2}, v3
    v_lshl_add_u32 v5, v4, 3, v5
    s_mul_i32 s27, s24, {32*D_*2}
    s_lshl_b32 s32, s26, 6
    s_add_u32 s27, s27, s32
    s_add_u32 s27, s27, {WS['Q%d'%L][0]}
    s_mov_b32 s32, {hex(QSCALE)}
    s_nop 7
    """)
    for g in range(4):
        for i in range(4): a(f"v_mul_f32 v{64+4*g+i}, s32, v{64+4*g+i}")
        a(f"""v_cvt_pk_bf16_f32 v{32+2*g}, v{64+4*g}, v{65+4*g}
        v_cvt_pk_bf16_f32 v{33+2*g}, v{66+4*g}, v{67+4*g}
        buffer_store_dwordx2 v[{32+2*g}:{33+2*g}], v5, s[16:19], s27 offen offset:{16*g}""")
    a(f"s_branch {pfx}_end\n{pfx}_k:")
    a(f"""
    s_lshl_b32 s27, s24, 12
    s_add_u32 s27, s27, {WS['KV%d'%L][0]}
    v_cmp_eq_u32 vcc, 1, v4
    s_nop 7
    s_nop 1
    """)
    for r in range(8): a(f"v_cvt_pk_bf16_f32 v{32+r}, v{64+2*r}, v{65+2*r}")
    a("v_cndmask_b32 v38, v38, 0, vcc\nv_cndmask_b32 v39, v39, 0, vcc\nv_mov_b32 v12, 0")
    for r in range(8):
        a(f"""v_lshlrev_b32 v13, 16, v{32+r}
        v_and_b32 v14, 0xffff0000, v{32+r}
        v_fmac_f32 v12, v13, v13
        v_fmac_f32 v12, v14, v14""")
    a(f"""
    v_mov_b32 v13, 0x3f803f80
    v_mov_b32 v14, 0x3f80
    v_cndmask_b32 v38, v38, v13, vcc
    v_cndmask_b32 v39, v39, v14, vcc
    v_mov_b32 v13, v12
    buffer_store_dwordx4 v[32:35], v9, s[16:19], s27 offen
    buffer_store_dwordx4 v[36:39], v9, s[16:19], s27 offen offset:1024
    v_permlane32_swap_b32 v12, v13
    s_nop 1
    v_add_f32 v12, v12, v13
    s_nop 1
    v_max_f32_dpp v12, v12, v12 row_shr:1 row_mask:0xf bank_mask:0xf
    s_nop 1
    v_max_f32_dpp v12, v12, v12 row_shr:2 row_mask:0xf bank_mask:0xf
    s_nop 1
    v_max_f32_dpp v12, v12, v12 row_shr:4 row_mask:0xf bank_mask:0xf
    s_nop 1
    v_max_f32_dpp v12, v12, v12 row_shr:8 row_mask:0xf bank_mask:0xf
    s_nop 1
    v_readlane_b32 s32, v12, 15
    v_readlane_b32 s33, v12, 31
    s_nop 3
    s_max_u32 s32, s32, s33
    v_mov_b32 v12, s32
    v_mov_b32 v13, 0
    s_lshl_b32 s27, s24, 2
    s_add_u32 s27, s27, {WS['KM%d'%L][0]}
    buffer_store_dword v12, v13, s[16:19], s27 offen
    s_branch {pfx}_end
    {pfx}_v:
    """)
    loop(True)
    a(f"""
    s_lshl_b32 s27, s24, 12
    s_add_u32 s27, s27, {WS['KV%d'%L][0]}
    v_cmp_eq_u32 vcc, 28, v3
    v_mov_b32 v13, 0x3f803f80
    s_nop 0
    v_cndmask_b32 v13, 0, v13, vcc
    v_cmp_lt_u32 vcc, 27, v3
    s_nop 7
    """)
    for r in range(8): a(f"v_cvt_pk_bf16_f32 v{32+r}, v{64+2*r}, v{65+2*r}")
    for r in range(8): a(f"v_cndmask_b32 v{32+r}, v{32+r}, v13, vcc")
    a(f"""
    buffer_store_dwordx4 v[32:35], v9, s[16:19], s27 offen offset:2048
    buffer_store_dwordx4 v[36:39], v9, s[16:19], s27 offen offset:3072
    {pfx}_end:
    """)

def qkv_kernel(layer):
    nm = f"qkv{layer}_kernel"
    a = A()
    a.raw(kernel_head(nm))
    a(f"s_cmp_ge_u32 s2, 256\ns_cbranch_scc1 {nm}_exit")
    qkv_body(a, f"qkv{layer}", layer)
    a(f"{nm}_exit:\ns_endpgm")
    return a.text(), kernel_desc(nm, 128), (nm, 256, 256, QKV_LDS)
```

```python
import sys
from asmlib import *
from k_prep import prep_kernel
from k_qkv import qkv_kernel
from k_att import att_kernel
from k_gr import gr_kernel
from k_gu import gu_kernel
HDR = open('interleave_layers__grouped_kv_mqa__glu_gated_glu__prompt.s.ref').read().split("; Override")[0]
def assemble(ks, path):
    t = HDR
    for _, _, (nm, g, b, lds) in ks: t += f"; @launch kernel={nm} grid=({g},1,1) block=({b},1,1) lds={lds}\n"
    t += '.amdgcn_target "amdgcn-amd-amdhsa--gfx950"\n.text\n'
    seen = set(); body = ""; desc = ""
    for b, d, (nm, *_) in ks:
        if nm in seen: continue
        seen.add(nm); body += b; desc += d
    t += body + '.section .rodata,"a"\n' + desc
    open(path, "w").write(t)
if __name__ == "__main__":
    ks = [prep_kernel()]
    for L in range(2): ks += [qkv_kernel(L), att_kernel(L), gr_kernel('o', L), gu_kernel(L), gr_kernel('d', L)]
    assemble(ks, sys.argv[1] if len(sys.argv) > 1 else "v1.s")
```

```python
from gen import *
def empty():
    return kernel_head("nop_kernel") + "  s_endpgm\n", kernel_desc("nop_kernel", 8), ("nop_kernel", 256, 256, 0)
base = [prep_kernel()]
for L in range(2): base += [qkv_kernel(L), att_kernel(L), gr_kernel('o', L), gu_kernel(L), gr_kernel('d', L)]
assemble(base + [empty()]*11, "e_plus11.s")
assemble([k for b in base for k in (b, b)], "e_twice.s")
assemble(base[:3] + [base[2]]*5 + base[3:], "e_att5.s")
assemble(base[:5] + [base[4]]*5 + base[5:], "e_gu5.s")
assemble(base[:6] + [base[5]]*5 + base[6:], "e_grd5.s")
```

```python
class A:
    def __init__(self):
        self.l = []
    def __call__(self, s):
        for x in s.split("\n"):
            x = x.strip()
            if x: self.l.append("  " + x if not x.endswith(":") else x)
    def raw(self, s): self.l.append(s)
    def text(self): return "\n".join(self.l) + "\n"
    def wait(self, vm=None, lgkm=None):
        p = []
        if vm is not None:
            assert 0 <= vm <= 63, vm
            p.append(f"vmcnt({vm})")
        if lgkm is not None:
            assert 0 <= lgkm <= 15, lgkm
            p.append(f"lgkmcnt({lgkm})")
        self("s_waitcnt " + " ".join(p))
    stamps = False
    def stamp(self, i, real=False):
        if A.stamps and real and i == 0:
            for j in range(2, 14): self(f"s_mov_b32 s{64+2*j}, 0")
        if A.stamps: self(f"{'s_memrealtime' if real else 's_memtime'} s[{64+2*i}:{65+2*i}]\ns_waitcnt lgkmcnt(0)")
    def stamp_out(self, kidx, n=16):
        if not A.stamps: return
        self(f"s_waitcnt vmcnt(0)\ns_memtime s[{64+2*14}:{65+2*14}]\ns_memrealtime s[{64+2*15}:{65+2*15}]\ns_waitcnt lgkmcnt(0)")
        self(f"s_lshl_b32 s60, s2, 2\ns_add_u32 s60, s60, s3\ns_lshl_b32 s60, s60, 6\ns_add_u32 s60, s60, {WS['STMP'][0] + kidx*65536}\nv_mov_b32 v1, 0")
        for i in range(n):
            self(f"v_mov_b32 v0, s{64+2*i}\nbuffer_store_dword v0, v1, s[16:19], s60 offen offset:{4*i}")
    def rt(self, i):
        if A.stamps: self(f"{'s_memrealtime' if A.stamps == 1 else 's_memtime'} s[{64+2*i}:{65+2*i}]")
    def rt_out(self, kidx):
        if not A.stamps: return
        self(f"s_waitcnt lgkmcnt(0)\ns_lshl_b32 s60, s2, 2\ns_add_u32 s60, s60, s3\ns_lshl_b32 s60, s60, 6\ns_add_u32 s60, s60, {WS['STMP'][0]}")
        self("s_cmp_lg_u32 s15, 0\ns_cselect_b32 s39, 0x10000, 0\ns_add_u32 s60, s60, s39\nv_mov_b32 v1, 0")
        for i in range(16):
            self(f"v_mov_b32 v10, s{64+2*i}\nbuffer_store_dword v10, v1, s[16:19], s60 offen offset:{4*i}")
        self("s_waitcnt vmcnt(0)")
    def srd(self, d, base, size, off=0):
        if off:
            self(f"s_add_u32 s{d}, s{base}, {hex(off)}\ns_addc_u32 s{d+1}, s{base+1}, 0")
        else:
            self(f"s_mov_b32 s{d}, s{base}\ns_mov_b32 s{d+1}, s{base+1}")
        self(f"s_mov_b32 s{d+2}, {hex(size)}\ns_mov_b32 s{d+3}, 0x20000")

def v(a, n=1): return f"v{a}" if n == 1 else f"v[{a}:{a+n-1}]"
def ac(a, n=1): return f"a{a}" if n == 1 else f"a[{a}:{a+n-1}]"
def s(a, n=1): return f"s{a}" if n == 1 else f"s[{a}:{a+n-1}]"
def R(a, n=1):
    if a >= 256: return ac(a - 256, n)
    assert a + n <= 256
    return v(a, n)

def kernel_head(name):
    return f".globl {name}\n.p2align 8\n.type {name},@function\n{name}:\n"
def kernel_desc(name, nv, na=0, ns=102):
    off = (nv + 3) // 4 * 4
    tot = off + na if na else nv
    return f""".p2align 6
.amdhsa_kernel {name}
  .amdhsa_next_free_vgpr {tot}
  .amdhsa_next_free_sgpr {ns}
  .amdhsa_accum_offset {off}
  .amdhsa_group_segment_fixed_size 0
  .amdhsa_kernarg_size 96
  .amdhsa_user_sgpr_count 2
  .amdhsa_user_sgpr_kernarg_segment_ptr 1
  .amdhsa_system_sgpr_workgroup_id_x 1
.end_amdhsa_kernel
"""
S_, D_, H_, DH, F_ = 2048, 448, 16, 28, 1792
def _al(x): return (x + 4095) // 4096 * 4096
WS = {}
_o = 0
for nm, sz in [("WGU", 112*28*1024), ("CSF", 112*1024), ("WD", 14*112*1024), ("WO", 14*32*1024), ("PFL", 4096)]:
    WS[nm] = (_o, sz); _o += _al(sz)
_l0 = _o
_per = [("Q", 64*32*1024), ("KV", 64*4096), ("KM", 256), ("O", 64*32*1024), ("XO", 64*28*1024), ("XD", 64*28*1024),
        ("ST", 64*14*256), ("H", 64*112*1024), ("FLG", 8*8192)]
for L in range(2):
    for nm, sz in _per:
        WS[nm + str(L)] = (_o, sz); _o += _al(sz)
    if L == 0: LSTRIDE = _o - _l0
WS["X1"], WS["X2"], WS["X3"] = WS["XO0"], WS["XD0"], WS["XO1"]
WS["STMP"] = (_o, 16*65536); _o += 16*65536
WS_END = _o
KA = dict(x=0, wq=8, wk=16, wv=24, wo=32, bx=40, wg=48, wu=56, wd=64, out=72, dbg=80, ws=88)

class Ctr:
    def __init__(self, a, kind, cap):
        self.a, self.kind, self.cap, self.q = a, kind, cap, []
    def issue(self, tag, text):
        self.a(text); self.q.append(tag)
        assert len(self.q) <= self.cap, (self.kind, len(self.q), tag)
    def need(self, *tags):
        idx = max([i for i, t in enumerate(self.q) if t in tags], default=-1)
        return None if idx < 0 else len(self.q) - idx - 1
    def wait(self, *tags):
        n = self.need(*tags)
        if n is None: return
        self.a(f"s_waitcnt {self.kind}({n})")
        self.q = self.q[len(self.q) - n:] if n else []
    def drain(self):
        self.a(f"s_waitcnt {self.kind}(0)"); self.q = []

def split_lines(text):
    return [x.strip() for x in text.split("\n") if x.strip()]
def interleave(a, main, side, every, first=0):
    side = list(side); n = first
    for op in main:
        a(op); n += 1
        if n >= every and side:
            side.pop(0)(); n = 0
    for t in side: t()
```

```python
import sys, math, struct
from asmlib import *
def f2u(x): return struct.unpack("<I", struct.pack("<f", x))[0]
KN = "interleave_layers__grouped_kv_mqa__glu_gated_glu__prompt_kernel"
PX, PWQ, PWK, PWV, PWO, PWG, PWU, PWD, POUT = 40, 42, 44, 46, 48, 52, 54, 56, 58
NONCE = 14
LDS_TOTAL = 163840
RED = LDS_TOTAL - 49152
QSCALE = f2u(math.log2(math.e) / math.sqrt(DH))
TB = 60.0
SPIN = 200000
F_QKV, F_ATT, F_O, F_GUA, F_GUB, F_D = 0, 1, 2, 3, 4, 5
def FL(ph): return WS['FLG0'][0] + ph*8192
F_PREP = WS['PFL'][0]
_uid = [0]
def uid(p): _uid[0] += 1; return f"{p}{_uid[0]}"

def signal(a, base, val=None, tmp=10, vm="s_waitcnt vmcnt(0)"):
    a(f"""s_lshl_b32 s38, s2, 2
    s_add_u32 s38, s38, s3
    s_lshl_b32 s38, s38, 3
    s_add_u32 s38, s38, {base}
    s_add_u32 s38, s38, s15
    v_mov_b32 v{tmp}, s{NONCE}
    v_mov_b32 v{tmp+1}, {val if val else 0}
    v_mov_b32 v1, 0
    {vm}
    s_mov_b64 exec, 1
    buffer_store_dwordx2 v[{tmp}:{tmp+1}], v1, s[16:19], s38 offen sc1
    s_mov_b64 exec, -1""")
def wait_flags(a, items):
    l, d = uid("W"), uid("Wd")
    a(f"s_mov_b32 s39, {SPIN}\n{l}:")
    for base, va, vd in items:
        a(f"s_add_u32 s38, s15, {base}\nbuffer_load_dwordx2 v[{vd}:{vd+1}], v{va}, s[16:19], s38 offen sc1")
    a("s_waitcnt vmcnt(0)")
    for i, (base, va, vd) in enumerate(items):
        if i == 0: a(f"v_cmp_ne_u32 vcc, s{NONCE}, v{vd}")
        else: a(f"v_cmp_ne_u32 s[36:37], s{NONCE}, v{vd}\ns_nop 1\ns_or_b64 vcc, vcc, s[36:37]")
    a(f"""s_nop 1
    s_cmp_eq_u64 vcc, 0
    s_cbranch_scc1 {d}
    s_sub_u32 s39, s39, 1
    s_cmp_lg_u32 s39, 0
    s_cbranch_scc1 {l}
    {d}:""")
def slot_addr(a, dst, jexpr_v, wave_v):
    a(f"""s_and_b32 s38, s2, 7
    v_lshl_add_u32 v{dst}, v{jexpr_v}, 3, s38
    v_lshl_add_u32 v{dst}, v{dst}, 2, v{wave_v}
    v_lshlrev_b32 v{dst}, 3, v{dst}""")

def prologue(a):
    a(f"""s_cmp_ge_u32 s2, 256
    s_cbranch_scc1 L_exit
    s_load_dwordx16 s[40:55], s[0:1], 0
    s_load_dwordx4 s[56:59], s[0:1], 64
    s_load_dwordx4 s[4:7], s[0:1], 80
    s_memrealtime s[8:9]
    v_lshrrev_b32 v1, 6, v0
    v_and_b32 v2, 63, v0
    v_and_b32 v3, 31, v0
    v_readfirstlane_b32 s3, v1
    v_lshrrev_b32 v4, 5, v2
    v_lshlrev_b32 v9, 4, v2
    v_cmp_eq_u32 s[62:63], 1, v4
    s_waitcnt lgkmcnt(0)
    s_mov_b32 s15, 0
    s_mov_b32 s12, s6
    s_mov_b32 s13, s7
    s_mov_b32 s6, 256
    s_mov_b32 s7, 0x20000""")
    a.srd(16, 12, WS_END)
    a(f"""s_or_b32 s10, s2, s3
    s_cmp_lg_u32 s10, 0
    s_cbranch_scc1 L_notag
    s_or_b32 s8, s8, 1
    v_mov_b32 v10, s8
    v_mov_b32 v1, 0
    buffer_store_dword v10, v1, s[4:7], 0 offen sc1
    L_notag:""")
def get_nonce(a):
    a(f"""v_mov_b32 v1, 0
    s_mov_b32 s39, {SPIN}
    L_tag:
    buffer_load_dword v10, v1, s[4:7], 0 offen sc1
    s_waitcnt vmcnt(0)
    v_readfirstlane_b32 s{NONCE}, v10
    s_sub_u32 s39, s39, 1
    s_cmp_eq_u32 s39, 0
    s_cbranch_scc1 L_tagd
    s_cmp_eq_u32 s{NONCE}, 0
    s_cbranch_scc1 L_tag
    L_tagd:""")
def roles_tt(a):
    a("""s_and_b32 s24, s2, 7
    s_lshr_b32 s25, s2, 5
    s_lshl_b32 s24, s24, 3
    s_add_u32 s24, s24, s25
    s_bfe_u32 s26, s2, 0x20003""")

RES = 248
def roles_o(a):
    a("""s_lshr_b32 s11, s2, 3
    s_mul_i32 s26, s11, 9363
    s_lshr_b32 s26, s26, 16
    s_mul_i32 s27, s26, 7
    s_sub_u32 s25, s11, s27
    s_min_u32 s26, s26, 3
    s_and_b32 s24, s2, 7
    s_lshl_b32 s24, s24, 2
    s_add_u32 s24, s24, s26
    s_lshr_b32 s26, s3, 1
    s_and_b32 s27, s3, 1
    s_lshl_b32 s24, s24, 1
    s_lshl_b32 s25, s25, 1
    s_add_u32 s24, s24, s26
    s_add_u32 s25, s25, s27
    s_xor_b32 s26, s24, 1
    s_xor_b32 s27, s25, 1""")
def rm_addr(a):
    a(f"""v_mul_u32_u24 v5, {D_*2}, v3
    v_lshl_add_u32 v5, v4, 3, v5
    s_mul_i32 s37, s24, {32*D_*2}
    s_lshl_b32 s38, s25, 6
    s_add_u32 s37, s37, s38""")
def prep_setup(a):
    a(f"""v_lshrrev_b32 v13, 3, v2
    v_and_b32 v14, 7, v2
    v_lshlrev_b32 v14, 4, v14
    s_mov_b32 s31, 0x20000
    s_cmp_ge_u32 s2, 112
    s_cbranch_scc1 L_ps_b
    s_cmp_ge_u32 s3, 2
    s_cselect_b32 s28, s{PWU}, s{PWG}
    s_cselect_b32 s29, s{PWU+1}, s{PWG+1}
    s_mov_b32 s30, {D_*F_*2}
    s_and_b32 s34, s2, 3
    s_mul_i32 s34, s34, 112
    s_and_b32 s35, s3, 1
    s_mul_i32 s35, s35, 56
    s_add_u32 s34, s34, s35
    s_mul_i32 s34, s34, {F_*2}
    s_lshr_b32 s35, s2, 2
    s_lshl_b32 s35, s35, 7
    s_add_u32 s34, s34, s35
    s_mov_b32 s35, {F_*2}
    s_branch L_ps_e
    L_ps_b:
    s_sub_u32 s34, s2, 112
    s_cmp_ge_u32 s34, 98
    s_cselect_b32 s28, s{PWO}, s{PWD}
    s_cselect_b32 s29, s{PWO+1}, s{PWD+1}
    s_mov_b32 s30, {F_*D_*2}
    s_cselect_b32 s30, {D_*D_*2}, s30
    s_cselect_b32 s36, 28, 32
    s_cselect_b32 s37, 98, 0
    s_cmp_ge_u32 s2, 238
    s_cselect_b32 s30, 0, s30
    s_sub_u32 s34, s34, s37
    s_mul_i32 s35, s34, 9363
    s_lshr_b32 s35, s35, 16
    s_mul_i32 s37, s35, 7
    s_sub_u32 s34, s34, s37
    s_lshl_b32 s35, s35, 2
    s_add_u32 s35, s35, s3
    s_mul_i32 s35, s35, s36
    s_mul_i32 s35, s35, {D_*2}
    s_lshl_b32 s34, s34, 7
    s_add_u32 s34, s34, s35
    s_mov_b32 s35, {D_*2}
    L_ps_e:
    v_mul_lo_u32 v7, v13, s35
    s_lshl_b32 s35, s35, 3
    v_add_u32 v7, v7, v14""")
def prep_load(a, i):
    a(f"buffer_load_dwordx4 a[{4*i}:{4*i+3}], v7, s[28:31], s34 offen\ns_add_u32 s34, s34, s35")
def prep_finish(a):
    a(f"""s_mul_i32 s28, s3, 28672
    v_add_u32 v10, s28, v9
    v_bfe_u32 v5, v2, 4, 1
    v_bfe_u32 v7, v2, 2, 2
    v_and_b32 v8, 3, v2
    v_lshl_add_u32 v6, v4, 2, v7
    v_lshlrev_b32 v6, 7, v6
    v_lshl_add_u32 v6, v8, 3, v6""")
    for i in range(7): a(f"ds_write_b128 v10, a[{4*i}:{4*i+3}] offset:{1024*i}")
    a(f"""s_waitcnt lgkmcnt(0)
    s_barrier
    s_cmp_ge_u32 s2, 238
    s_cbranch_scc1 L_pf_e
    s_cmp_ge_u32 s2, 112
    s_cbranch_scc1 L_pf_b
    v_mul_u32_u24 v11, 57344, v5
    v_add_u32 v11, v11, v6
    s_lshl_b32 s28, s3, 5
    v_add_u32 v11, s28, v11
    s_and_b32 s25, s2, 3
    s_and_b32 s26, s2, 0xfc
    s_add_u32 s26, s26, s3
    s_mul_i32 s27, s26, 28
    s_mul_i32 s28, s25, 7
    s_add_u32 s27, s27, s28
    s_lshl_b32 s27, s27, 10
    s_add_u32 s27, s27, {WS['WGU'][0]}
    v_mov_b32 v12, 0""")
    off = lambda R: (R // 56)*28672 + (R % 56)*128
    for ks in range(7):
        a(f"ds_read_b64_tr_b16 v[{16+4*ks}:{17+4*ks}], v11 offset:{off(16*ks)}")
        a(f"ds_read_b64_tr_b16 v[{18+4*ks}:{19+4*ks}], v11 offset:{off(16*ks+8)}")
    for ks in range(7):
        a.wait(lgkm=2*(6-ks))
        a(f"buffer_store_dwordx4 v[{16+4*ks}:{19+4*ks}], v9, s[16:19], s27 offen sc1\ns_add_u32 s27, s27, 1024")
        for r in range(4):
            a(f"""v_lshlrev_b32 v13, 16, v{16+4*ks+r}
            v_and_b32 v14, 0xffff0000, v{16+4*ks+r}
            v_add_f32 v12, v12, v13
            v_add_f32 v12, v12, v14""")
    a(f"""v_mov_b32 v13, v12
    s_nop 1
    v_permlane32_swap_b32 v12, v13
    s_nop 1
    v_add_f32 v12, v12, v13
    v_cvt_pk_bf16_f32 v13, v12, 0
    v_lshlrev_b32 v14, 16, v13
    v_sub_f32 v14, v12, v14
    v_cvt_pk_bf16_f32 v12, v12, v14
    v_lshlrev_b32 v15, 4, v3
    s_lshl_b32 s26, s26, 10
    s_lshr_b32 s27, s25, 1
    s_lshl_b32 s27, s27, 9
    s_and_b32 s28, s25, 1
    s_lshl_b32 s28, s28, 3
    s_add_u32 s26, s26, s27
    s_add_u32 s26, s26, s28
    s_add_u32 s26, s26, {WS['CSF'][0]}
    buffer_store_dwordx2 v[12:13], v15, s[16:19], s26 offen sc1
    s_branch L_pf_e
    L_pf_b:
    s_sub_u32 s24, s2, 112
    s_cmp_ge_u32 s24, 98
    s_cselect_b32 s31, 32, 112
    s_mov_b32 s32, {WS['WD'][0]}
    s_cselect_b32 s32, {WS['WO'][0]}, s32
    s_cselect_b32 s33, 98, 0
    s_sub_u32 s24, s24, s33
    s_mul_i32 s25, s24, 9363
    s_lshr_b32 s25, s25, 16
    s_mul_i32 s26, s25, 7
    s_sub_u32 s24, s24, s26
    s_lshl_b32 s26, s25, 2
    s_add_u32 s26, s26, s3
    v_lshl_add_u32 v11, v5, 5, v6
    v_add_u32 v11, s28, v11
    s_lshl_b32 s24, s24, 1
    s_mul_i32 s27, s24, s31
    s_lshl_b32 s26, s26, 1
    s_add_u32 s27, s27, s26
    s_lshl_b32 s27, s27, 10
    s_add_u32 s27, s27, s32
    s_lshl_b32 s31, s31, 10
    s_add_u32 s28, s27, s31""")
    for t in range(2):
        for b in range(2):
            r = 16 + 8*t + 4*b
            a(f"ds_read_b64_tr_b16 v[{r}:{r+1}], v11 offset:{b*2048+t*64}")
            a(f"ds_read_b64_tr_b16 v[{r+2}:{r+3}], v11 offset:{b*2048+t*64+1024}")
    a.wait(lgkm=0)
    for t in range(2):
        for b in range(2):
            r = 16 + 8*t + 4*b
            a(f"buffer_store_dwordx4 v[{r}:{r+3}], v9, s[16:19], s{27+t} offen offset:{b*1024} sc1")
    a(f"""L_pf_e:
    s_lshl_b32 s38, s2, 2
    s_add_u32 s38, s38, {F_PREP}
    v_mov_b32 v10, s{NONCE}
    v_mov_b32 v1, 0
    s_waitcnt vmcnt(0)
    s_barrier
    s_cmp_lg_u32 s3, 0
    s_cbranch_scc1 L_pf_x
    s_mov_b64 exec, 1
    buffer_store_dword v10, v1, s[16:19], s38 offen sc1
    s_mov_b64 exec, -1
    L_pf_x:""")

LX, LS = 4*28672, 5*28672
def qkv_wsetup(a):
    a(f"""s_lshl_b32 s26, s26, 2
    s_add_u32 s26, s26, s3
    s_cmp_eq_u32 s26, 14
    s_cselect_b32 s20, s{PWK}, s{PWQ}
    s_cselect_b32 s21, s{PWK+1}, s{PWQ+1}
    s_cmp_eq_u32 s26, 15
    s_cselect_b32 s20, s{PWV}, s20
    s_cselect_b32 s21, s{PWV+1}, s21
    s_cmp_ge_u32 s26, 14
    s_mov_b32 s22, {D_*D_*2}
    s_cselect_b32 s22, {D_*DH*2}, s22
    s_cselect_b32 s33, {DH*2}, {D_*2}
    s_cselect_b32 s32, 0, s26
    s_mov_b32 s23, 0x20000
    s_lshl_b32 s32, s32, 6
    v_lshrrev_b32 v6, 2, v2
    v_and_b32 v8, 3, v2
    v_mul_lo_u32 v6, v6, s33
    v_lshl_add_u32 v6, v8, 4, v6
    s_lshl_b32 s33, s33, 4
    s_mul_i32 s25, s3, 28672
    s_mov_b32 m0, s25""")
def qkv_wdma(a):
    a("buffer_load_dwordx4 v6, s[20:23], s32 offen lds\ns_add_u32 m0, m0, 1024\ns_add_u32 s32, s32, s33")
def qkv(a, L):
    P = f"q{L}"
    rowmajor = (L == 0)
    roles_tt(a)
    if rowmajor:
        a.srd(20, PX, S_*D_*2)
        a(f"""v_mul_u32_u24 v5, {D_*2}, v3
        v_lshl_add_u32 v5, v4, 4, v5
        s_mul_i32 s27, s24, {32*D_*2}
        s_mul_i32 s32, s3, {7*32}
        s_add_u32 s27, s27, s32""")
        for i in range(7): a(f"buffer_load_dwordx4 v[{32+4*i}:{35+4*i}], v5, s[20:23], s27 offen offset:{32*i}")
        qkv_wsetup(a)
        for i in range(12): qkv_wdma(a)
        prep_setup(a)
        side = [lambda: qkv_wdma(a)]*16 + [(lambda i=i: prep_load(a, i)) for i in range(7)]
        nafter = 12
    else:
        qkv_wsetup(a)
        a(f"""s_lshr_b32 s36, s2, 6
        s_mul_i32 s36, s36, 7
        v_min_u32 v10, 13, v2
        v_lshrrev_b32 v11, 1, v10
        v_add_u32 v11, s36, v11
        v_and_b32 v10, 1, v10
        s_and_b32 s36, s24, 1
        s_lshl_b32 s36, s36, 1
        v_add_u32 v10, s36, v10""")
        slot_addr(a, 12, 11, 10)
        wait_flags(a, [(FL(F_D), 12, 14)])
        a(f's_mov_b32 s15, {LSTRIDE}')
        a.rt(1)
        a(f"""s_mul_i32 s27, s24, 28
        s_mul_i32 s36, s3, 7
        s_add_u32 s27, s27, s36
        s_lshl_b32 s27, s27, 10
        s_add_u32 s27, s27, {WS['X2'][0]}
        s_add_u32 s36, s27, 4096""")
        for i in range(7): a(f"buffer_load_dwordx4 v[{32+4*i}:{35+4*i}], v9, s[16:19], s{27 if i<4 else 36} offen offset:{1024*(i%4)} sc1")
        side = []; nafter = 0
    a(f"""v_bfe_u32 v10, v2, 2, 2
    v_lshl_add_u32 v10, v4, {3 if rowmajor else 2}, v10
    v_lshlrev_b32 v10, 6, v10
    v_bfe_u32 v11, v2, 4, 1
    v_lshl_add_u32 v10, v11, 5, v10
    v_lshl_add_u32 v10, v8, 3, v10
    v_add_u32 v10, s25, v10
    v_mov_b32 v12, 0
    v_mov_b32 v13, 0
    v_mov_b32 v14, 0
    v_mov_b32 v15, 0
    s_waitcnt vmcnt({nafter})""")
    ops = []
    for r in range(28):
        ops += split_lines(f"""v_lshlrev_b32 v{64+2*r}, 16, v{32+r}
        v_and_b32 v{65+2*r}, 0xffff0000, v{32+r}
        v_add_f32 v12, v12, v{64+2*r}
        v_fmac_f32 v13, v{64+2*r}, v{64+2*r}
        v_add_f32 v14, v14, v{65+2*r}
        v_fmac_f32 v15, v{65+2*r}, v{65+2*r}""")
    interleave(a, ops, side[:14], 12)
    a(f"""v_add_f32 v12, v12, v14
    v_add_f32 v13, v13, v15
    s_lshl_b32 s36, s3, 9
    v_lshlrev_b32 v14, 3, v2
    s_add_u32 s36, s36, {LS - 1024}
    v_add_u32 v15, s36, v14
    ds_write_b64 v15, v[12:13]
    v_lshlrev_b32 v14, 3, v3
    v_add_u32 v14, {LS - 1024}, v14
    v_add_u32 v8, {LX}, v9
    s_waitcnt lgkmcnt(0)
    s_barrier""")
    for i in range(8): a(f"ds_read_b64 v[{16+2*i}:{17+2*i}], v14 offset:{256*i}")
    for t in side[14:16]: t()
    a("s_waitcnt lgkmcnt(0)\ns_barrier")
    for i in range(1, 8): a(f"v_add_f32 v16, v16, v{16+2*i}\nv_add_f32 v17, v17, v{17+2*i}")
    a(f"""v_mul_f32 v16, {hex(f2u(1.0/D_))}, v16
    v_mul_f32 v17, {hex(f2u(1.0/D_))}, v17
    v_fma_f32 v17, -v16, v16, v17
    v_max_f32 v17, 0, v17
    v_add_f32 v17, {hex(f2u(1e-5))}, v17
    v_rsq_f32 v17, v17
    s_mul_i32 s36, s3, 7168
    v_add_u32 v15, s36, v8
    v_mul_f32 v16, v16, v17""")
    for i in range(7):
        for r in range(4):
            q = 64 + 8*i + 2*r
            a(f"""v_fma_f32 v{q}, v{q}, v17, -v16
            v_fma_f32 v{q+1}, v{q+1}, v17, -v16
            v_cvt_pk_bf16_f32 v{32+4*i+r}, v{q}, v{q+1}""")
        a(f"ds_write_b128 v15, v[{32+4*i}:{35+4*i}] offset:{1024*i}")
        if 16 + i < len(side): side[16+i]()
    a(f"s_waitcnt vmcnt({7 if rowmajor else 0}) lgkmcnt(0)\ns_barrier")
    second = 256 if rowmajor else 512
    def rd(ks):
        j = 32 + 8*(ks % 4)
        a(f"""ds_read_b64_tr_b16 v[{j}:{j+1}], v10 offset:{ks*1024}
        ds_read_b64_tr_b16 v[{j+2}:{j+3}], v10 offset:{ks*1024+second}
        ds_read_b128 v[{j+4}:{j+7}], v8 offset:{ks*1024}""")
    def loop(swap):
        for ks in range(3): rd(ks)
        for ks in range(28):
            if ks + 3 < 28: rd(ks + 3)
            a.wait(lgkm=3*min(3, 27-ks))
            j = 32 + 8*(ks % 4)
            x, y = (f"v[{j+4}:{j+7}]", f"v[{j}:{j+3}]") if swap else (f"v[{j}:{j+3}]", f"v[{j+4}:{j+7}]")
            a(f"v_mfma_f32_32x32x16_bf16 v[64:79], {x}, {y}, {'0' if ks==0 else 'v[64:79]'}")
    def tilenorm():
        a("v_dot2_f32_bf16 v12, v32, v32, 0")
        for r in range(1, 8): a(f"v_dot2_f32_bf16 v12, v{32+r}, v{32+r}, v12")
        a("s_nop 2\nv_mov_b32 v13, v12\ns_nop 1\nv_permlane32_swap_b32 v12, v13\ns_nop 1\nv_add_f32 v12, v12, v13")
        for sh in (1, 2, 4, 8): a(f"s_nop 1\nv_max_f32_dpp v12, v12, v12 row_shr:{sh} row_mask:0xf bank_mask:0xf")
        a("s_nop 1\nv_readlane_b32 s36, v12, 15\nv_readlane_b32 s37, v12, 31\ns_nop 3\ns_max_u32 s36, s36, s37")
    a(f"s_cmp_eq_u32 s26, 15\ns_cbranch_scc1 {P}_v")
    loop(False)
    a(f"s_cmp_eq_u32 s26, 14\ns_cbranch_scc1 {P}_k")
    a(f"""s_lshl_b32 s27, s24, 15
    s_add_u32 s27, s27, {WS['Q%d'%L][0]}
    s_lshl_b32 s32, s26, 3
    v_add_u32 v5, s32, v4
    s_mov_b32 s33, 9363
    s_mov_b32 s32, {hex(QSCALE)}""")
    for g in range(4):
        a(f"""v_add_u32 v6, {2*g}, v5
        v_mul_u32_u24 v7, s33, v6
        v_lshrrev_b32 v7, 16, v7
        v_mul_u32_u24 v11, 7, v7
        v_sub_u32 v6, v6, v11
        v_lshlrev_b32 v7, 11, v7
        v_lshrrev_b32 v11, 2, v6
        v_lshl_add_u32 v7, v11, 10, v7
        v_and_b32 v11, 1, v6
        v_lshl_add_u32 v7, v11, 9, v7
        v_bfe_u32 v11, v6, 1, 1
        v_lshl_add_u32 v7, v11, 3, v7
        v_lshl_add_u32 v{16+g}, v3, 4, v7""")
    for g in range(4):
        for i in range(4): a(f"v_mul_f32 v{64+4*g+i}, s32, v{64+4*g+i}")
        a(f"""v_cvt_pk_bf16_f32 v{32+2*g}, v{64+4*g}, v{65+4*g}
        v_cvt_pk_bf16_f32 v{33+2*g}, v{66+4*g}, v{67+4*g}
        buffer_store_dwordx2 v[{32+2*g}:{33+2*g}], v{16+g}, s[16:19], s27 offen sc1""")
    tilenorm()
    a(f"s_branch {P}_end\n{P}_k:")
    a(f"""s_lshl_b32 s27, s24, 12
    s_add_u32 s27, s27, {WS['KV%d'%L][0]}
    v_mov_b32 v13, 0x3f803f80
    v_mov_b32 v14, 0x3f80
    s_nop 7""")
    for r in range(8): a(f"v_cvt_pk_bf16_f32 v{32+r}, v{64+2*r}, v{65+2*r}")
    a(f"""v_cndmask_b32 v42, v38, v13, s[62:63]
    v_cndmask_b32 v43, v39, v14, s[62:63]
    v_mov_b32 v40, v36
    v_mov_b32 v41, v37
    buffer_store_dwordx4 v[32:35], v9, s[16:19], s27 offen sc1
    buffer_store_dwordx4 v[40:43], v9, s[16:19], s27 offen offset:1024 sc1
    v_cndmask_b32 v38, v38, 0, s[62:63]
    v_cndmask_b32 v39, v39, 0, s[62:63]""")
    tilenorm()
    a(f"s_branch {P}_end\n{P}_v:")
    loop(True)
    a(f"""s_lshl_b32 s27, s24, 12
    s_add_u32 s27, s27, {WS['KV%d'%L][0]}
    v_cmp_eq_u32 vcc, 28, v3
    v_mov_b32 v13, 0x3f803f80
    s_mov_b32 s36, 0
    v_cndmask_b32 v13, 0, v13, vcc
    v_cmp_lt_u32 vcc, 27, v3
    s_nop 7""")
    for r in range(8): a(f"v_cvt_pk_bf16_f32 v{32+r}, v{64+2*r}, v{65+2*r}")
    for r in range(8): a(f"v_cndmask_b32 v{32+r}, v{32+r}, v13, vcc")
    a(f"""buffer_store_dwordx4 v[32:35], v9, s[16:19], s27 offen offset:2048 sc1
    buffer_store_dwordx4 v[36:39], v9, s[16:19], s27 offen offset:3072 sc1
    {P}_end:
    s_mov_b32 s35, s36""")
    if L == 0: get_nonce(a)
    signal(a, FL(F_QKV), "s35")
    a.rt(2)
    if L == 0:
        roles_o(a)
        a.srd(20, PX, S_*D_*2)
        rm_addr(a)
        for g in range(4): a(f"buffer_load_dwordx2 a[{RES+2*g}:{RES+1+2*g}], v5, s[20:23], s37 offen offset:{16*g}")
        prep_finish(a)
    else: a("s_barrier")

QB, KVB, SB, EB, PB, OB = 16, 48, 112, 144, 160, 168
WOA, WDA, NWD = 0, 112, 17
KORD = [7*c + t for c in range(4) for t in range(4)] + [7*c + t for c in range(4) for t in range(4, 7)]
def mf(d, x, y, c): return f"v_mfma_f32_32x32x16_bf16 v[{d}:{d+15}], v[{x}:{x+3}], v[{y}:{y+3}], " + (c if isinstance(c, str) else f"v[{c}:{c+15}]")
def wmax(a, r, dst):
    for sh in (1, 2, 4, 8): a(f"s_nop 1\nv_max_f32_dpp v{r}, v{r}, v{r} row_shr:{sh} row_mask:0xf bank_mask:0xf")
    a(f"""s_nop 1
    v_readlane_b32 s36, v{r}, 15
    v_readlane_b32 s37, v{r}, 31
    v_readlane_b32 s38, v{r}, 47
    v_readlane_b32 s39, v{r}, 63
    s_nop 3
    s_max_u32 s36, s36, s37
    s_max_u32 s38, s38, s39
    s_max_u32 s{dst}, s36, s38""")
def att(a):
    vm = Ctr(a, "vmcnt", 63)
    roles_o(a)
    a(f"""s_lshl_b32 s36, s3, 3
    s_lshl_b32 s96, s25, 5
    s_lshl_b32 s97, s27, 5
    s_add_u32 s96, s96, s36
    s_add_u32 s97, s97, s36
    s_lshl_b32 s96, s96, 10
    s_lshl_b32 s97, s97, 10
    s_add_u32 s96, s96, {WS['WO'][0]}
    s_add_u32 s97, s97, {WS['WO'][0]}
    s_mul_i32 s36, s3, 28
    s_mul_i32 s98, s25, 112
    s_mul_i32 s99, s27, 112
    s_add_u32 s98, s98, s36
    s_add_u32 s99, s99, s36
    s_lshl_b32 s98, s98, 10
    s_lshl_b32 s99, s99, 10
    s_add_u32 s98, s98, {WS['WD'][0]}
    s_add_u32 s99, s99, {WS['WD'][0]}
    s_and_b32 s100, s11, 15
    s_mul_i32 s100, s100, {7*28672}
    s_mul_i32 s101, s3, 7168
    s_add_u32 s100, s100, s101
    s_add_u32 s100, s100, {WS['WGU'][0]}""")
    roles_tt(a)
    a(f"""s_lshl_b32 s27, s3, 16
    s_add_u32 s27, s27, s15
    s_add_u32 s27, s27, {WS['KV0'][0]}
    s_add_u32 s20, s12, s27
    s_addc_u32 s21, s13, 0
    s_mov_b32 s22, 65536
    s_mov_b32 s23, 0x20000
    v_lshrrev_b32 v10, 3, v2
    v_and_b32 v11, 7, v2
    v_lshlrev_b32 v10, 5, v10
    v_lshl_add_u32 v10, v11, 10, v10
    v_add_u32 v12, 784, v10
    v_and_b32 v10, 15, v2
    s_lshl_b32 s36, s3, 4
    v_add_u32 v10, s36, v10
    v_lshrrev_b32 v11, 3, v10
    v_and_b32 v10, 7, v10
    v_lshlrev_b32 v11, 5, v11
    v_lshl_add_u32 v10, v10, 10, v11
    v_add_u32 v10, 792, v10
    s_mul_i32 s36, s26, 7
    s_lshr_b32 s36, s36, 1
    v_and_b32 v11, 3, v2
    v_add_u32 v11, s36, v11
    v_lshrrev_b32 v13, 2, v11
    v_and_b32 v11, 3, v11
    v_lshlrev_b32 v11, 3, v11
    v_lshl_add_u32 v11, v13, 8, v11
    s_and_b32 s36, s2, 7
    s_lshl_b32 s36, s36, 5
    s_lshr_b32 s37, s2, 5
    s_lshl_b32 s37, s37, 10
    s_add_u32 s36, s36, s37
    v_add_u32 v11, s36, v11
    v_cmp_gt_u32 vcc, 16, v2
    v_lshlrev_b32 v8, 2, v2
    s_lshl_b32 s27, s24, 15
    v_cndmask_b32 v13, v11, v10, vcc
    s_add_u32 s27, s27, s15
    s_add_u32 s27, s27, {WS['Q0'][0]}""")
    for r in range(64): a(f"v_mov_b32 v{OB+r}, 0")
    for r in range(4): a(f"v_mov_b32 v{KVB+60+r}, 0\nv_mov_b32 v{EB+12+r}, 0")
    a(f"v_mov_b32 v{PB+4}, 0\nv_mov_b32 v{PB+5}, 0")
    wait_flags(a, [(FL(F_QKV), 12, 14), (FL(F_QKV), 13, 10)])
    a.rt(3)
    def kvload(kt, p):
        r = KVB + 16*(kt % 4) + 4*p
        vm.issue(("kv", kt, p), f"buffer_load_dwordx4 v[{r}:{r+3}], v9, s[20:23], s30 offen offset:{1024*p} sc1")
        if p == 3: a("s_add_u32 s30, s30, 4096")
    def qload(i):
        a(f"""s_add_u32 s28, s3, {i}
        s_and_b32 s28, s28, 3
        s_lshl_b32 s29, s26, 2
        s_add_u32 s28, s28, s29
        s_lshl_b32 s28, s28, 11
        s_add_u32 s28, s28, s27""")
        for p in range(2): vm.issue(("q", i), f"buffer_load_dwordx4 v[{QB+8*i+4*p}:{QB+8*i+4*p+3}], v9, s[16:19], s28 offen offset:{1024*p} sc1")
    a("s_mov_b32 s30, 0")
    qload(0); kvload(0, 0); kvload(0, 1); qload(1); kvload(0, 2); kvload(0, 3); qload(2); qload(3)
    for kt in (1, 2):
        for p in range(4): kvload(kt, p)
    wmax(a, 15, 34); wmax(a, 11, 35)
    a(f"""v_mov_b32 v10, s34
    v_mul_f32 v10, s35, v10
    v_cmp_nge_f32 vcc, {hex(f2u(TB*TB/2))}, v10""")
    vm.wait(("q", 3))
    for i in range(4):
        a(f"v_cndmask_b32 v{QB+8*i+6}, v{QB+8*i+6}, 0, s[62:63]\nv_cndmask_b32 v{QB+8*i+7}, v{QB+8*i+7}, 0, s[62:63]")
    a("s_cbranch_vccz A_go")
    for i in range(4): a(f"v_mov_b32 v{EB+i}, 0xff800000")
    T = KVB + 48
    a(f"""s_mov_b32 s36, 0
    A_mx:
    buffer_load_dwordx4 v[{T}:{T+3}], v9, s[20:23], s36 offen sc1
    buffer_load_dwordx4 v[{T+4}:{T+7}], v9, s[20:23], s36 offen offset:1024 sc1
    s_waitcnt vmcnt(0)""")
    for i in range(4):
        a(mf(SB, T, QB+8*i, "0")); a(mf(SB, T+4, QB+8*i+4, SB)); a("s_nop 15")
        for r in range(8): a(f"v_max3_f32 v{EB+i}, v{EB+i}, v{SB+2*r}, v{SB+2*r+1}")
    a("s_add_u32 s36, s36, 4096\ns_cmp_lt_u32 s36, 65536\ns_cbranch_scc1 A_mx")
    for i in range(4):
        a(f"""s_add_u32 s28, s3, {i}
        s_and_b32 s28, s28, 3
        s_lshl_b32 s28, s28, 10
        s_add_u32 s28, s28, {RED}
        s_lshl_b32 s29, s3, 8
        s_add_u32 s29, s29, s28
        v_add_u32 v6, s29, v8
        ds_write_b32 v6, v{EB+i}
        v_lshl_add_u32 v{EB+4+i}, v3, 2, s28""")
    a("s_waitcnt lgkmcnt(0)\ns_barrier")
    for i in range(4):
        for p in range(8): a(f"ds_read_b32 v{SB+p}, v{EB+4+i} offset:{128*p}")
        a(f"""s_waitcnt lgkmcnt(0)
        v_max3_f32 v{SB}, v{SB}, v{SB+1}, v{SB+2}
        v_max3_f32 v{SB}, v{SB}, v{SB+3}, v{SB+4}
        v_max3_f32 v{SB}, v{SB}, v{SB+5}, v{SB+6}
        v_max_f32 v{SB}, v{SB}, v{SB+7}
        v_sub_f32 v{SB}, 0, v{SB}
        v_cvt_pk_bf16_f32 v{SB+1}, v{SB}, 0
        v_lshlrev_b32 v{SB+2}, 16, v{SB+1}
        v_sub_f32 v{SB+2}, v{SB}, v{SB+2}
        v_cvt_pk_bf16_f32 v{SB+1}, v{SB}, v{SB+2}
        v_and_b32 v{SB+3}, 0xffff0000, v{SB+1}
        v_sub_f32 v{SB+2}, v{SB+2}, v{SB+3}
        v_cvt_pk_bf16_f32 v{SB+2}, v{SB+2}, 0
        v_cndmask_b32 v{QB+8*i+6}, v{QB+8*i+6}, v{SB+1}, s[62:63]
        v_cndmask_b32 v{QB+8*i+7}, v{QB+8*i+7}, v{SB+2}, s[62:63]""")
    a("s_barrier\nA_go:")
    a(mf(SB, KVB, QB, "0")); a(mf(SB, KVB+4, QB+4, SB))
    a(f"s_mov_b32 s31, {F_PREP}\ns_nop 7\ns_nop 3")
    a.rt(4)
    side = []
    def ldA(reg, s, off): side.append(lambda: vm.issue("pf", f"buffer_load_dwordx4 a[{reg}:{reg+3}], v9, s[16:19], s{s} offen offset:{off} sc1"))
    def sa(txt):
        f = side.pop(); side.append(lambda: (a(txt), f()))
    for k in range(8):
        for p in range(2):
            ldA(WOA + 8*k + 4*p, 96+p, 1024*(k % 4))
            if k == 4: sa(f"s_add_u32 s{96+p}, s{96+p}, 4096")
    for t in range(4):
        for i in range(7):
            side.append(lambda i=i: vm.issue("pf", f"buffer_load_dwordx4 v9, s[16:19], s100 offen offset:{1024*(i%4)} sc1 lds"))
            if i == 0: sa(f"s_add_u32 m0, s101, {t*28672}" + (f"\ns_add_u32 s100, s100, {28672-4096}" if t else ""))
            if i == 4: sa("s_add_u32 m0, m0, 4096\ns_add_u32 s100, s100, 4096")
    cur = 0
    for n in range(NWD):
        base = KORD[n] - (n % 4 if n < 16 else (n-16) % 3)
        for p in range(2):
            ldA(WDA + 8*n + 4*p, 98+p, 1024*(KORD[n]-base))
            if base != cur: sa(f"s_add_u32 s{98+p}, s{98+p}, {(1024*(base-cur)) & 0xffffffff}")
        cur = base
    def e(i, sb): a(f"v_exp_f32 v{EB+i}, v{sb+i}")
    def c(p): a(f"v_cvt_pk_bf16_f32 v{PB+p}, v{EB+2*p}, v{EB+2*p+1}")
    def sd(u):
        if u >= 12 and side: side.pop(0)()
    for u in range(64):
        kt, qi = u // 4, u % 4
        sc, sn = SB + 16*(u % 2), SB + 16*((u+1) % 2)
        nk, nq = (kt, qi+1) if qi < 3 else (kt+1, 0)
        pk, pq = (kt, qi-1) if qi > 0 else (kt-1, 3)
        Kn = KVB + 16*(nk % 4)
        if qi == 3: vm.wait(("kv", kt+1, 3))
        if u == 11:
            vm.wait("pfl")
            a(f"""v_cmp_ne_u32 vcc, s{NONCE}, v232
            v_cmp_ne_u32 s[36:37], s{NONCE}, v233
            v_cmp_ne_u32 s[38:39], s{NONCE}, v234
            v_cmp_ne_u32 s[32:33], s{NONCE}, v235
            s_or_b64 vcc, vcc, s[36:37]
            s_nop 0
            s_or_b64 s[38:39], s[38:39], s[32:33]
            s_or_b64 vcc, vcc, s[38:39]
            s_cbranch_scc1 A_pw
            A_pb:""")
        if u < 63: a(mf(sn, Kn, QB+8*nq, "0"))
        e(0, sc); c(6); e(1, sc); c(7); e(2, sc); sd(u); e(3, sc)
        if u < 63: a(mf(sn, Kn+4, QB+8*nq+4, sn))
        e(4, sc); c(0); e(5, sc); c(1); e(6, sc)
        if u == 5: vm.issue("pfl", "buffer_load_dwordx4 v[232:235], v9, s[16:19], s31 offen sc1")
        e(7, sc)
        a(mf(OB+16*pq, KVB+16*(pk % 4)+12, PB+4, OB+16*pq))
        e(8, sc)
        if qi == 1 and kt + 3 < 16: kvload(kt+3, 0)
        c(2); e(9, sc)
        if qi == 1 and kt + 3 < 16: kvload(kt+3, 1)
        c(3); e(10, sc)
        if qi == 1 and kt + 3 < 16: kvload(kt+3, 2)
        e(11, sc)
        if qi == 1 and kt + 3 < 16: kvload(kt+3, 3)
        a(mf(OB+16*qi, KVB+16*(kt % 4)+8, PB, OB+16*qi))
        e(12, sc); c(4); e(13, sc); c(5); e(14, sc)
        if qi != 1: sd(u)
        e(15, sc)
    assert not side, len(side)
    a.rt(5)
    c(6); c(7)
    for i in range(1, 4):
        a(f"""s_add_u32 s28, s3, {i}
        s_and_b32 s28, s28, 3
        s_mul_i32 s28, s28, 12288
        s_add_u32 s28, s28, {RED}
        v_add_u32 v{10+i}, s28, v9""")
    a(mf(OB+48, KVB+48+12, PB+4, OB+48))
    a(f"s_mul_i32 s28, s3, 12288\ns_add_u32 s28, s28, {RED}\nv_add_u32 v10, s28, v9")
    for i in range(1, 4):
        if i == 3: a("s_nop 7")
        for p in range(4):
            r = OB + 16*i + 4*p
            a(f"ds_write_b128 v{10+i}, v[{r}:{r+3}] offset:{(i-1)*4096+p*1024}")
    a(f"""s_lshl_b32 s27, s24, 5
    s_lshl_b32 s28, s26, 2
    s_add_u32 s28, s28, s3
    s_lshl_b32 s28, s28, 1
    s_add_u32 s27, s27, s28
    s_lshl_b32 s27, s27, 10
    s_add_u32 s27, s27, s15
    s_add_u32 s27, s27, {WS['O0'][0]}
    s_waitcnt lgkmcnt(0)
    s_barrier""")
    for i in range(12):
        r = OB + 16 + 4*i
        a(f"ds_read_b128 v[{r}:{r+3}], v10 offset:{i*1024}")
    for i in range(3):
        a.wait(lgkm=8-4*i)
        for r in range(16): a(f"v_add_f32 v{OB+r}, v{OB+r}, v{OB+16+16*i+r}")
    a(f"""v_mov_b32 v11, v{OB+12}
    v_mov_b32 v12, v{OB+12}
    s_nop 1
    v_permlane32_swap_b32 v11, v12
    s_nop 1
    v_rcp_f32 v12, v12
    s_nop 0""")
    for r in range(16): a(f"v_mul_f32 v{OB+r}, v{OB+r}, v12")
    for r in range(8): a(f"v_cvt_pk_bf16_f32 v{PB+r}, v{OB+2*r}, v{OB+2*r+1}")
    a(f"""v_cndmask_b32 v{PB+6}, v{PB+6}, 0, s[62:63]
    v_cndmask_b32 v{PB+7}, v{PB+7}, 0, s[62:63]
    buffer_store_dwordx4 v[{PB}:{PB+3}], v9, s[16:19], s27 offen sc1
    buffer_store_dwordx4 v[{PB+4}:{PB+7}], v9, s[16:19], s27 offen offset:1024 sc1""")
    signal(a, FL(F_ATT))
    a.rt(6)
    a("s_barrier")
def att_cold(a):
    a(f"""A_pw:
    s_mov_b32 s34, {SPIN}
    A_pw1:
    buffer_load_dwordx4 v[232:235], v9, s[16:19], s31 offen sc1
    s_waitcnt vmcnt(0)
    v_cmp_ne_u32 vcc, s{NONCE}, v232
    v_cmp_ne_u32 s[36:37], s{NONCE}, v233
    v_cmp_ne_u32 s[38:39], s{NONCE}, v234
    v_cmp_ne_u32 s[32:33], s{NONCE}, v235
    s_or_b64 vcc, vcc, s[36:37]
    s_nop 0
    s_or_b64 s[38:39], s[38:39], s[32:33]
    s_or_b64 vcc, vcc, s[38:39]
    s_cbranch_scc0 A_pb
    s_sub_u32 s34, s34, 1
    s_cmp_lg_u32 s34, 0
    s_cbranch_scc1 A_pw1
    s_branch A_pb""")

def red_addr(a):
    for i in range(4):
        a(f"""s_xor_b32 s39, s3, {i}
        s_mul_i32 s39, s39, 12288
        s_add_u32 s39, s39, {RED}
        v_add_u32 v{10+i}, s39, v9""")
def reduce4(a, acc, T):
    for i in range(1, 4):
        if i == 3: a("s_nop 7")
        for p in range(4): a(f"ds_write_b128 v{10+i}, {R(acc+16*i+4*p, 4)} offset:{(i-1)*4096+p*1024}")
    for r in range(8):
        a(f"""v_accvgpr_read_b32 v14, a{RES+r}
        v_lshlrev_b32 v15, 16, v14
        v_and_b32 v14, 0xffff0000, v14""")
        if acc >= 256:
            a(f"""v_accvgpr_read_b32 v{T+2*r}, a{acc-256+2*r}
            v_accvgpr_read_b32 v{T+2*r+1}, a{acc-256+2*r+1}
            v_add_f32 v{T+2*r}, v{T+2*r}, v15
            v_add_f32 v{T+2*r+1}, v{T+2*r+1}, v14""")
        else:
            a(f"v_add_f32 v{T+2*r}, v{acc+2*r}, v15\nv_add_f32 v{T+2*r+1}, v{acc+2*r+1}, v14")
    a("s_waitcnt lgkmcnt(0)\ns_barrier")
    for i in range(12): a(f"ds_read_b128 v[{T+16+4*i}:{T+19+4*i}], v10 offset:{i*1024}")
    for i in range(3):
        a.wait(lgkm=8-4*i)
        for r in range(16): a(f"v_add_f32 v{T+r}, v{T+r}, v{T+16+16*i+r}")
    for r in range(8): a(f"v_cvt_pk_bf16_f32 v{T+16+r}, v{T+2*r}, v{T+2*r+1}")
def xstore(a, T, name):
    a(f"""s_mul_i32 s38, s24, 28
    s_lshl_b32 s39, s25, 1
    s_add_u32 s38, s38, s39
    s_lshl_b32 s38, s38, 10
    s_add_u32 s38, s38, s15
    s_add_u32 s38, s38, {WS[name][0]}""")
    for j in range(2): a(f"buffer_store_dwordx4 v[{T+16+4*j}:{T+19+4*j}], v9, s[16:19], s38 offen offset:{1024*j} sc1")
def keep_res(a, T):
    for r in range(8): a(f"v_accvgpr_write_b32 a{RES+r}, v{T+16+r}")

def oproj(a):
    vm = Ctr(a, "vmcnt", 63)
    roles_o(a)
    a(f"""s_cmp_ge_u32 s11, 28
    s_cbranch_scc1 O_skip
    s_and_b32 s36, s24, 6
    v_bfe_u32 v10, v2, 2, 1
    v_add_u32 v10, s36, v10
    v_lshl_add_u32 v11, v10, 2, s3
    v_and_b32 v10, 3, v2""")
    slot_addr(a, 14, 11, 10)
    a(f"""s_lshl_b32 s36, s3, 3
    s_lshl_b32 s30, s24, 5
    s_lshl_b32 s31, s26, 5
    s_add_u32 s30, s30, s36
    s_add_u32 s31, s31, s36
    s_lshl_b32 s30, s30, 10
    s_lshl_b32 s31, s31, 10
    s_add_u32 s36, s15, {WS['O0'][0]}
    s_add_u32 s30, s30, s36
    s_add_u32 s31, s31, s36""")
    red_addr(a)
    wait_flags(a, [(FL(F_ATT), 14, 16)])
    a.rt(7)
    AC, FB = 16, 80
    for k in range(8):
        for ib in range(2):
            r = FB + 8*k + 4*ib
            if k == 4: a(f"s_add_u32 s{30+ib}, s{30+ib}, 4096")
            vm.issue((k, ib), f"buffer_load_dwordx4 v[{r}:{r+3}], v9, s[16:19], s{30+ib} offen offset:{1024*(k%4)} sc1")
    for k in range(8):
        for ib in range(2):
            vm.wait((k, ib))
            for ia in range(2):
                t = AC + 16*(2*ib + ia); w = WOA + 8*k + 4*ia; r = FB + 8*k + 4*ib
                a(f"v_mfma_f32_32x32x16_bf16 v[{t}:{t+15}], a[{w}:{w+3}], v[{r}:{r+3}], {'0' if k==0 else 'v[%d:%d]'%(t,t+15)}")
    a("s_nop 3")
    T = FB
    reduce4(a, AC, T)
    xstore(a, T, 'XO0')
    a(f"v_add_f32 v24, v{T}, v{T+1}\nv_mul_f32 v25, v{T}, v{T}\nv_fmac_f32 v25, v{T+1}, v{T+1}")
    for r in range(2, 16): a(f"v_add_f32 v24, v24, v{T+r}\nv_fmac_f32 v25, v{T+r}, v{T+r}")
    a(f"""v_mov_b32 v26, v24
    v_mov_b32 v27, v25
    s_mul_i32 s38, s24, 14
    s_add_u32 s38, s38, s25
    v_permlane32_swap_b32 v24, v26
    v_permlane32_swap_b32 v25, v27
    s_lshl_b32 s38, s38, 8
    s_add_u32 s38, s38, s15
    s_add_u32 s38, s38, {WS['ST0'][0]}
    v_add_f32 v24, v24, v26
    v_add_f32 v25, v25, v27
    v_lshlrev_b32 v6, 3, v3
    buffer_store_dwordx2 v[24:25], v6, s[16:19], s38 offen sc1""")
    keep_res(a, T)
    signal(a, FL(F_O))
    a("s_barrier\nO_skip:")
    a.rt(8)

ACC, WF, CS, TMP = 16, 128, 160, 192
NA = 4
def gu(a):
    vm = Ctr(a, "vmcnt", 63); lg = Ctr(a, "lgkmcnt", 15)
    a(f"""s_and_b32 s24, s2, 7
    s_lshr_b32 s26, s2, 7
    s_lshl_b32 s26, s26, 2
    s_add_u32 s26, s26, s3
    s_lshl_b32 s24, s24, 3
    s_add_u32 s24, s24, s26
    s_bfe_u32 s25, s2, 0x40003
    s_lshr_b32 s36, s26, 1
    s_mul_i32 s36, s36, 7
    v_min_u32 v10, 13, v2
    v_lshrrev_b32 v11, 1, v10
    v_add_u32 v11, s36, v11
    v_and_b32 v10, 1, v10
    s_and_b32 s36, s26, 1
    s_lshl_b32 s36, s36, 1
    v_add_u32 v10, s36, v10""")
    slot_addr(a, 14, 11, 10)
    a(f"""s_mul_i32 s26, s24, {28*1024}
    s_add_u32 s26, s26, s15
    s_add_u32 s26, s26, {WS['XO0'][0]}
    s_mul_i32 s28, s3, 7168
    s_mul_i32 s27, s25, {7*28672}
    s_add_u32 s27, s27, s28
    s_add_u32 s27, s27, {WS['WGU'][0]}
    v_mov_b32 v10, v9
    v_add_u32 v11, {2*28672}, v9
    v_add_u32 v12, {4*28672}, v9
    v_mul_u32_u24 v5, {7*256}, v4
    v_lshl_add_u32 v5, v3, 3, v5
    s_mul_i32 s30, s24, {14*256}
    s_add_u32 s30, s30, s15
    s_add_u32 s30, s30, {WS['ST0'][0]}
    s_mul_i32 s31, s25, {7*1024}
    s_add_u32 s31, s31, {WS['CSF'][0]}
    s_add_u32 s32, s31, 4096
    s_mul_i32 s33, s24, 112
    s_mul_i32 s34, s25, 7
    s_add_u32 s33, s33, s34
    s_lshl_b32 s33, s33, 10
    s_add_u32 s33, s33, s15
    s_add_u32 s33, s33, {WS['H0'][0]}
    s_add_u32 s34, s33, 4096""")
    def dma(t, i):
        if i % 4 == 0: a(f"s_add_u32 m0, s28, {(t % 5)*28672 + i*1024}\ns_add_u32 s29, s27, {t*28672 + i*1024}")
        vm.issue(("w", t, i), f"buffer_load_dwordx4 v9, s[16:19], s29 offen offset:{1024*(i%4)} sc1 lds")
    def xld(ks):
        vm.issue(("x", ks), f"buffer_load_dwordx4 a[{4*ks}:{4*ks+3}], v9, s[16:19], s26 offen offset:{1024*(ks%4)} sc1")
        if ks % 4 == 3: a("s_add_u32 s26, s26, 4096")
    def rd(t, ks, reg):
        slot = t % 5
        lg.issue(("r", t, ks), f"ds_read_b128 v[{reg}:{reg+3}], v{10+slot//2} offset:{(slot%2)*28672 + ks*1024}")
    def mfma(t, reg, ks):
        d = ACC + 16*t
        a(f"v_mfma_f32_32x32x16_bf16 v[{d}:{d+15}], v[{reg}:{reg+3}], a[{4*ks}:{4*ks+3}], {'0' if ks==0 else 'v[%d:%d]'%(d,d+15)}")
    def csmfma(t):
        d = ACC + 16*t
        a(f"v_mfma_f32_32x32x16_bf16 v[{d}:{d+15}], v[{CS+4*t}:{CS+4*t+3}], v[{TMP}:{TMP+3}], v[{d}:{d+15}]")
    SIG, C1 = TMP+4, TMP+5
    def stats_ops():
        o = []; S0 = TMP + 8
        for i in range(1, 7): o += [f"v_add_f32 v{S0}, v{S0}, v{S0+2*i}", f"v_add_f32 v{S0+1}, v{S0+1}, v{S0+2*i+1}"]
        o += [f"v_mov_b32 v{S0+2}, v{S0}", f"v_mov_b32 v{S0+3}, v{S0+1}", "s_nop 1",
              f"v_permlane32_swap_b32 v{S0}, v{S0+2}", f"v_permlane32_swap_b32 v{S0+1}, v{S0+3}", "s_nop 1",
              f"v_add_f32 v{S0}, v{S0}, v{S0+2}", f"v_add_f32 v{S0+1}, v{S0+1}, v{S0+3}",
              f"v_mul_f32 v{S0}, {hex(f2u(-1.0/D_))}, v{S0}", f"v_mul_f32 v{S0+1}, {hex(f2u(1.0/D_))}, v{S0+1}",
              f"v_fma_f32 v{S0+1}, -v{S0}, v{S0}, v{S0+1}", f"v_max_f32 v{S0+1}, 0, v{S0+1}",
              f"v_add_f32 v{S0+1}, {hex(f2u(1e-5))}, v{S0+1}",
              f"v_cvt_pk_bf16_f32 v{TMP}, v{S0}, v{S0}", f"v_rsq_f32 v{C1}, v{S0+1}",
              f"v_and_b32 v{S0+2}, 0xffff0000, v{TMP}", f"v_mul_f32 v{SIG}, v{S0+1}, v{C1}",
              f"v_sub_f32 v{S0+2}, v{S0}, v{S0+2}", f"v_mul_f32 v{C1}, {hex(f2u(-math.log2(math.e)))}, v{C1}",
              f"v_cvt_pk_bf16_f32 v{TMP+1}, v{S0+2}, 0", f"v_mov_b32 v{TMP+2}, v{TMP}", f"v_mov_b32 v{TMP+3}, v{TMP+1}"]
        return [(x, 4) for x in o]
    def epi_ops(t):
        d = ACC + 16*t; E = TMP + 24; P = TMP + 32 + 4*(t % 2)
        o = []
        for half in range(2):
            js = range(4*half, 4*half+4)
            o += [(f"v_mul_f32 v{E+j}, v{C1}, v{d+j}", 4) for j in js]
            o += [(f"v_exp_f32 v{E+j}, v{E+j}", 8) for j in js]
            o += [(f"v_fma_f32 v{E+j}, v{E+j}, v{SIG}, v{SIG}", 4) for j in js]
            o += [(f"v_rcp_f32 v{E+j}, v{E+j}", 8) for j in js]
            o += [(f"v_mul_f32 v{E+j}, v{E+j}, v{d+8+j}", 4) for j in js]
            o += [(f"v_cvt_pk_bf16_f32 v{P+2*half+q}, v{E+4*half+2*q}, v{E+4*half+2*q+1}", 4) for q in range(2)]
        o += [((("st", t), f"buffer_store_dwordx4 v[{P}:{P+3}], v9, s[16:19], s{33 if t<4 else 34} offen offset:{1024*(t%4)} sc1"), 4)]
        return o
    q = []
    def fill(budget):
        while q and budget >= q[0][1]:
            op, c = q.pop(0); budget -= c
            if isinstance(op, tuple): vm.issue(op[0], op[1])
            else: a(op)
    for t in range(NA): rd(t, 0, WF + 4*t)
    wait_flags(a, [(FL(F_O), 14, 16)])
    a.rt(9)
    for ks in range(8): xld(ks)
    other = [(lambda i=i: vm.issue("stat", f"buffer_load_dwordx2 v[{TMP+8+2*i}:{TMP+9+2*i}], v5, s[16:19], s30 offen offset:{256*i} sc1")) for i in range(7)]
    other += [(lambda i=i: dma(NA, i)) for i in range(7)]
    other += [(lambda t=t: vm.issue("cs", f"buffer_load_dwordx4 v[{CS+4*t}:{CS+4*t+3}], v9, s[16:19], s{31 if t<4 else 32} offen offset:{1024*(t%4)} sc1")) for t in range(7)]
    for ks in range(28):
        cur, nxt = WF + 16*(ks % 2), WF + 16*((ks+1) % 2)
        vm.wait(("x", ks))
        if ks == 27: vm.wait(("w", NA, 6)); lg.drain(); a("s_barrier")
        if ks == 18: vm.wait("stat"); q += stats_ops()
        for t in range(NA):
            lg.wait(("r", t, ks))
            mfma(t, cur + 4*t, ks)
            if ks < 27: rd(t, ks+1, nxt + 4*t)
            elif t < 3: rd(NA, t, WF + 4*t)
            if t == 0 and ks + 8 < 28: xld(ks + 8)
            if t == 2 and other: other.pop(0)()
            fill(16)
    assert not q and not other
    vm.wait("cs")
    a("s_nop 0")
    for t in range(NA): csmfma(t)
    a.rt(10)
    pend = list(range(NA))
    seq = [(t, ks) for t in range(NA, 7) for ks in range(28)]
    gap = 0; ready = {t: 2 for t in range(NA)}; sigA = False
    for n, (t, ks) in enumerate(seq):
        if n + 3 < len(seq):
            t2, k2 = seq[n+3]
            if k2 == 0: vm.wait(("w", t2, 6)); a("s_barrier")
        lg.wait(("r", t, ks))
        mfma(t, WF + 4*(n % 4), ks)
        if n + 3 < len(seq): rd(t2, k2, WF + 4*((n+3) % 4))
        busy = t == NA and ks < 14
        if busy: dma(5 + ks // 7, ks % 7)
        while pend and ready[pend[0]] <= gap: q += epi_ops(pend.pop(0))
        if t == 6 and ks == 14:
            assert not any(isinstance(op, tuple) and op[0][1] < 4 for op, c in q)
            vm.wait(("st", 3)); signal(a, FL(F_GUA), tmp=14, vm=""); vm.q.append("sig")
        else: fill(12 if busy else 20)
        gap += 1
        if ks == 27:
            csmfma(t); pend.append(t); ready[t] = gap + 4
            fill(16)
    a("s_nop 7\ns_nop 3")
    while pend: q += epi_ops(pend.pop(0))
    fill(10**9)
    signal(a, FL(F_GUB))
    a.rt(11)
    a("s_barrier")

def down(a):
    vm = Ctr(a, "vmcnt", 63)
    roles_tt(a); qkv_wsetup(a)
    a("s_cmp_lg_u32 s15, 0\ns_cselect_b32 s22, 0, s22")
    roles_o(a)
    a(f"""s_cmp_ge_u32 s11, 28
    s_cbranch_scc1 D_skip
    s_bfe_u32 s36, s24, 0x10002
    s_lshl_b32 s36, s36, 2
    s_add_u32 s36, s36, s3
    s_lshl_b32 s36, s36, 2
    v_and_b32 v11, 3, v2
    v_add_u32 v11, s36, v11
    v_bfe_u32 v10, v2, 2, 1
    s_and_b32 s36, s24, 2
    v_add_u32 v10, s36, v10""")
    slot_addr(a, 14, 11, 10)
    for d, src, base in ((28, 25, 'WD'), (29, 27, 'WD'), (30, 24, 'H0'), (31, 26, 'H0')):
        a(f"""s_mul_i32 s{d}, s{src}, 112
        s_mul_i32 s36, s3, 28
        s_add_u32 s{d}, s{d}, s36
        s_lshl_b32 s{d}, s{d}, 10
        s_add_u32 s{d}, s{d}, {WS[base][0]}""")
    a("s_add_u32 s30, s30, s15\ns_add_u32 s31, s31, s15")
    red_addr(a)
    wait_flags(a, [(FL(F_GUA), 14, 16)])
    a.rt(12)
    WR, HB, NS = 16, 104, 18
    cur = {28: 0, 30: 0}
    def ld(kind, n):
        sb = 28 if kind == 'w' else 30
        base = KORD[n] - (n % 4 if n < 16 else (n-16) % 3)
        for p in range(2):
            if base != cur[sb]: a(f"s_add_u32 s{sb+p}, s{sb+p}, {(1024*(base-cur[sb])) & 0xffffffff}")
            r = (WR + 8*(n-NWD) if kind == 'w' else HB + 8*(n % NS)) + 4*p
            vm.issue((kind, n, p), f"buffer_load_dwordx4 v[{r}:{r+3}], v9, s[16:19], s{sb+p} offen offset:{1024*(KORD[n]-base)} sc1")
        cur[sb] = base
    LA = 8
    for n in range(LA): ld('h', n)
    nw = NWD; nd = 0
    for n in range(28):
        if n == 5: a(f"s_add_u32 s35, s15, {FL(F_GUB)}"); vm.issue("fb", "buffer_load_dwordx2 v[248:249], v14, s[16:19], s35 offen sc1")
        if n == 8:
            vm.wait("fb")
            a(f"v_cmp_ne_u32 vcc, s{NONCE}, v248\ns_nop 4\ns_cbranch_vccnz D_pw\nD_pb:")
        for ib in range(2):
            vm.wait(('h', n, ib), ('w', n, 1))
            for ia in range(2):
                t = 16*(2*ib + ia); r = HB + 8*(n % NS) + 4*ib
                w = R((256 + WDA + 8*n if n < NWD else WR + 8*(n-NWD)) + 4*ia, 4)
                a(f"v_mfma_f32_32x32x16_bf16 a[{t}:{t+15}], {w}, v[{r}:{r+3}], {'0' if n==0 else 'a[%d:%d]'%(t,t+15)}")
            if ib == 0 and n + LA < 28: ld('h', n + LA)
            if ib == 1 and nw < 28 and n >= 4: ld('w', nw); nw += 1
            if n >= 18 and nd < 28:
                for _ in range(1 if ib == 0 else 2):
                    if nd < 28: vm.q.append("dma"); qkv_wdma(a); nd += 1
    assert nd == 28
    a.rt(13)
    a("s_nop 3")
    T = HB
    reduce4(a, 256, T)
    a("s_cmp_lg_u32 s15, 0\ns_cbranch_scc1 D_out")
    xstore(a, T, 'XD0')
    keep_res(a, T)
    signal(a, FL(F_D))
    a("s_barrier\ns_branch D_end\nD_skip:\ns_cmp_lg_u32 s15, 0\ns_cbranch_scc1 L_fin")
    for i in range(28): qkv_wdma(a)
    a("D_end:")
    a.rt(14)
def down_cold(a):
    a(f"""D_pw:
    s_mov_b32 s34, {SPIN}
    D_pw1:
    buffer_load_dwordx2 v[248:249], v14, s[16:19], s35 offen sc1
    s_waitcnt vmcnt(0)
    v_cmp_ne_u32 vcc, s{NONCE}, v248
    s_nop 4
    s_cbranch_vccz D_pb
    s_sub_u32 s34, s34, 1
    s_cmp_lg_u32 s34, 0
    s_cbranch_scc1 D_pw1
    s_branch D_pb
    D_out:""")
    a.srd(20, POUT, S_*D_*2)
    rm_addr(a)
    a("s_waitcnt vmcnt(0)")
    for g in range(4): a(f"buffer_store_dwordx2 v[{104+16+2*g}:{104+17+2*g}], v5, s[20:23], s37 offen offset:{16*g}")
    a("s_branch L_fin")

def build(path):
    a = A()
    a.raw(kernel_head(KN))
    prologue(a)
    a.rt(0)
    qkv(a, 0)
    a("L_layer:")
    att(a); oproj(a); gu(a); down(a)
    a.rt_out(0)
    a.rt(0)
    qkv(a, 1)
    a("s_branch L_layer")
    att_cold(a); down_cold(a)
    a("L_fin:")
    a.rt(14)
    a.rt_out(0)
    a("L_exit:\ns_endpgm")
    HDR = open('interleave_layers__grouped_kv_mqa__glu_gated_glu__prompt.s.ref').read().split("; Override")[0]
    t = HDR + f"; @launch grid=(256,1,1) block=(256,1,1) lds={LDS_TOTAL}\n" + '.amdgcn_target "amdgcn-amd-amdhsa--gfx950"\n.text\n'
    t += a.text() + '.section .rodata,"a"\n' + kernel_desc(KN, 256, 256)
    open(path, "w").write(t)
if __name__ == "__main__":
    A.stamps = len(sys.argv) > 2
    build(sys.argv[1])
```

```python
import sys, math, struct
from asmlib import *
def f2u(x): return struct.unpack("<I", struct.pack("<f", x))[0]
KN = "interleave_layers__grouped_kv_mqa__glu_gated_glu__prompt_kernel"
PX, PWQ, PWK, PWV, PWO, PWG, PWU, PWD, POUT = 40, 42, 44, 46, 48, 52, 54, 56, 58
NONCE = 14
LDS_TOTAL = 163840
RED = LDS_TOTAL - 49152
QSCALE = f2u(math.log2(math.e) / math.sqrt(DH))
TB = 60.0
SPIN = 200000
import os
FAST = int(os.environ.get('FAST', 1))
F_Q, F_ATT, F_O, F_GUA, F_GUB, F_D, F_KV = 0, 1, 2, 3, 4, 5, 6
MODE = 61
SLOT = 9
cold = []
def FL(ph): return WS['FLG0'][0] + ph*8192
F_PREP = WS['PFL'][0]
_uid = [0]
def uid(p): _uid[0] += 1; return f"{p}{_uid[0]}"

def lst(a, lines):
    if isinstance(lines, str): lines = [lines]
    l = uid("S")
    a(f"s_cmp_eq_u32 s{MODE}, 0\ns_cbranch_scc1 {l}")
    for x in lines: a(x)
    a(f"{l}b:")
    cold.append(f"{l}:\n" + "".join(x + " sc1\n" for x in lines) + f"s_branch {l}b")
def signal(a, base, val=None, tmp=10, vm="s_waitcnt vmcnt(0)", local=True):
    a(f"""s_add_u32 s38, s{SLOT}, {base}
    s_add_u32 s38, s38, s15
    v_mov_b32 v{tmp}, s{NONCE}
    v_mov_b32 v{tmp+1}, {val if val else 0}
    v_mov_b32 v1, 0
    {vm}
    s_mov_b64 exec, 1""")
    st = f"buffer_store_dwordx2 v[{tmp}:{tmp+1}], v1, s[16:19], s38 offen"
    if local: lst(a, st)
    else: a(st + " sc1")
    a("s_mov_b64 exec, -1")
def wait_flags(a, items):
    l, d = uid("W"), uid("Wd")
    a(f"s_mov_b32 s39, {SPIN}\n{l}:")
    for base, va, vd in items:
        a(f"s_add_u32 s38, s15, {base}\nbuffer_load_dwordx2 v[{vd}:{vd+1}], v{va}, s[16:19], s38 offen sc1")
    a("s_waitcnt vmcnt(0)")
    for i, (base, va, vd) in enumerate(items):
        if i == 0: a(f"v_cmp_ne_u32 vcc, s{NONCE}, v{vd}")
        else: a(f"v_cmp_ne_u32 s[36:37], s{NONCE}, v{vd}\ns_nop 1\ns_or_b64 vcc, vcc, s[36:37]")
    a(f"""s_nop 1
    s_cmp_eq_u64 vcc, 0
    s_cbranch_scc1 {d}
    s_sub_u32 s39, s39, 1
    s_cmp_lg_u32 s39, 0
    s_cbranch_scc1 {l}
    {d}:""")
def slot_addr(a, dst, jexpr_v, wave_v):
    a(f"""s_and_b32 s38, s2, 7
    s_lshl_b32 s38, s38, 10
    v_lshl_add_u32 v{dst}, v{jexpr_v}, 2, v{wave_v}
    v_lshl_add_u32 v{dst}, v{dst}, 3, s38""")

def prologue(a):
    a(f"""s_cmp_ge_u32 s2, 256
    s_cbranch_scc1 L_exit
    s_load_dwordx16 s[40:55], s[0:1], 0
    s_load_dwordx4 s[56:59], s[0:1], 64
    s_load_dwordx4 s[4:7], s[0:1], 80
    s_memrealtime s[8:9]
    v_lshrrev_b32 v1, 6, v0
    v_and_b32 v2, 63, v0
    v_and_b32 v3, 31, v0
    v_readfirstlane_b32 s3, v1
    v_lshrrev_b32 v4, 5, v2
    v_lshlrev_b32 v9, 4, v2
    v_cmp_eq_u32 s[62:63], 1, v4
    s_waitcnt lgkmcnt(0)
    s_mov_b32 s15, 0
    s_mov_b32 s{MODE}, 0
    s_getreg_b32 s10, hwreg(HW_REG_XCC_ID, 0, 4)
    s_mov_b32 s12, s6
    s_mov_b32 s13, s7
    s_mov_b32 s6, 256
    s_mov_b32 s7, 0x20000""")
    a.srd(16, 12, WS_END)
    a(f"""s_and_b32 s{SLOT}, s2, 7
    s_lshl_b32 s{SLOT}, s{SLOT}, 5
    s_lshr_b32 s11, s2, 3
    s_add_u32 s{SLOT}, s{SLOT}, s11
    s_lshl_b32 s{SLOT}, s{SLOT}, 2
    s_add_u32 s{SLOT}, s{SLOT}, s3
    s_lshl_b32 s{SLOT}, s{SLOT}, 3
    s_or_b32 s11, s2, s3
    s_cmp_lg_u32 s11, 0
    s_cbranch_scc1 L_notag
    s_lshl_b32 s8, s8, 5
    s_or_b32 s8, s8, 16
    v_mov_b32 v10, s8
    v_mov_b32 v1, 0
    buffer_store_dword v10, v1, s[4:7], 0 offen sc1
    L_notag:""")
def get_nonce(a):
    u = uid("T")
    a(f"""v_mov_b32 v1, 0
    s_mov_b32 s39, {SPIN}
    L_tag{u}:
    buffer_load_dword v10, v1, s[4:7], 0 offen sc1
    s_waitcnt vmcnt(0)
    v_readfirstlane_b32 s{NONCE}, v10
    s_sub_u32 s39, s39, 1
    s_cmp_eq_u32 s39, 0
    s_cbranch_scc1 L_tagd{u}
    s_cmp_eq_u32 s{NONCE}, 0
    s_cbranch_scc1 L_tag{u}
    L_tagd{u}:""")
def roles_tt(a):
    a("""s_and_b32 s24, s2, 7
    s_lshr_b32 s25, s2, 5
    s_lshl_b32 s24, s24, 3
    s_add_u32 s24, s24, s25
    s_bfe_u32 s26, s2, 0x20003""")

RES = 248
def roles_o(a):
    a("""s_lshr_b32 s11, s2, 3
    s_mul_i32 s26, s11, 9363
    s_lshr_b32 s26, s26, 16
    s_mul_i32 s27, s26, 7
    s_sub_u32 s25, s11, s27
    s_min_u32 s26, s26, 3
    s_and_b32 s24, s2, 7
    s_lshl_b32 s24, s24, 2
    s_add_u32 s24, s24, s26
    s_lshr_b32 s26, s3, 1
    s_and_b32 s27, s3, 1
    s_lshl_b32 s24, s24, 1
    s_lshl_b32 s25, s25, 1
    s_add_u32 s24, s24, s26
    s_add_u32 s25, s25, s27
    s_xor_b32 s26, s24, 1
    s_xor_b32 s27, s25, 1""")
def rm_addr(a):
    a(f"""v_mul_u32_u24 v5, {D_*2}, v3
    v_lshl_add_u32 v5, v4, 3, v5
    s_mul_i32 s37, s24, {32*D_*2}
    s_lshl_b32 s38, s25, 6
    s_add_u32 s37, s37, s38""")
def prep_setup(a):
    a(f"""v_lshrrev_b32 v13, 3, v2
    v_and_b32 v14, 7, v2
    v_lshlrev_b32 v14, 4, v14
    s_mov_b32 s31, 0x20000
    s_cmp_ge_u32 s2, 112
    s_cbranch_scc1 L_ps_b
    s_cmp_ge_u32 s3, 2
    s_cselect_b32 s28, s{PWU}, s{PWG}
    s_cselect_b32 s29, s{PWU+1}, s{PWG+1}
    s_mov_b32 s30, {D_*F_*2}
    s_and_b32 s34, s2, 3
    s_mul_i32 s34, s34, 112
    s_and_b32 s35, s3, 1
    s_mul_i32 s35, s35, 56
    s_add_u32 s34, s34, s35
    s_mul_i32 s34, s34, {F_*2}
    s_lshr_b32 s35, s2, 2
    s_lshl_b32 s35, s35, 7
    s_add_u32 s34, s34, s35
    s_mov_b32 s35, {F_*2}
    s_branch L_ps_e
    L_ps_b:
    s_sub_u32 s34, s2, 112
    s_cmp_ge_u32 s34, 98
    s_cselect_b32 s28, s{PWO}, s{PWD}
    s_cselect_b32 s29, s{PWO+1}, s{PWD+1}
    s_mov_b32 s30, {F_*D_*2}
    s_cselect_b32 s30, {D_*D_*2}, s30
    s_cselect_b32 s36, 28, 32
    s_cselect_b32 s37, 98, 0
    s_cmp_ge_u32 s2, 238
    s_cselect_b32 s30, 0, s30
    s_sub_u32 s34, s34, s37
    s_mul_i32 s35, s34, 9363
    s_lshr_b32 s35, s35, 16
    s_mul_i32 s37, s35, 7
    s_sub_u32 s34, s34, s37
    s_lshl_b32 s35, s35, 2
    s_add_u32 s35, s35, s3
    s_mul_i32 s35, s35, s36
    s_mul_i32 s35, s35, {D_*2}
    s_lshl_b32 s34, s34, 7
    s_add_u32 s34, s34, s35
    s_mov_b32 s35, {D_*2}
    L_ps_e:
    v_mul_lo_u32 v7, v13, s35
    s_lshl_b32 s35, s35, 3
    v_add_u32 v7, v7, v14""")
def prep_load(a, i):
    a(f"buffer_load_dwordx4 a[{4*i}:{4*i+3}], v7, s[28:31], s34 offen\ns_add_u32 s34, s34, s35")
def prep_finish(a):
    a(f"""s_mul_i32 s28, s3, 28672
    v_add_u32 v10, s28, v9
    v_bfe_u32 v5, v2, 4, 1
    v_bfe_u32 v7, v2, 2, 2
    v_and_b32 v8, 3, v2
    v_lshl_add_u32 v6, v4, 2, v7
    v_lshlrev_b32 v6, 7, v6
    v_lshl_add_u32 v6, v8, 3, v6""")
    for i in range(7): a(f"ds_write_b128 v10, a[{4*i}:{4*i+3}] offset:{1024*i}")
    a(f"""s_waitcnt lgkmcnt(0)
    s_barrier
    s_cmp_ge_u32 s2, 238
    s_cbranch_scc1 L_pf_e
    s_cmp_ge_u32 s2, 112
    s_cbranch_scc1 L_pf_b
    v_mul_u32_u24 v11, 57344, v5
    v_add_u32 v11, v11, v6
    s_lshl_b32 s28, s3, 5
    v_add_u32 v11, s28, v11
    s_and_b32 s25, s2, 3
    s_and_b32 s26, s2, 0xfc
    s_add_u32 s26, s26, s3
    s_mul_i32 s27, s26, 28
    s_mul_i32 s28, s25, 7
    s_add_u32 s27, s27, s28
    s_lshl_b32 s27, s27, 10
    s_add_u32 s27, s27, {WS['WGU'][0]}
    v_mov_b32 v12, 0""")
    off = lambda R: (R // 56)*28672 + (R % 56)*128
    for ks in range(7):
        a(f"ds_read_b64_tr_b16 v[{16+4*ks}:{17+4*ks}], v11 offset:{off(16*ks)}")
        a(f"ds_read_b64_tr_b16 v[{18+4*ks}:{19+4*ks}], v11 offset:{off(16*ks+8)}")
    for ks in range(7):
        a.wait(lgkm=2*(6-ks))
        a(f"buffer_store_dwordx4 v[{16+4*ks}:{19+4*ks}], v9, s[16:19], s27 offen sc1\ns_add_u32 s27, s27, 1024")
        for r in range(4):
            a(f"""v_lshlrev_b32 v13, 16, v{16+4*ks+r}
            v_and_b32 v14, 0xffff0000, v{16+4*ks+r}
            v_add_f32 v12, v12, v13
            v_add_f32 v12, v12, v14""")
    a(f"""v_mov_b32 v13, v12
    s_nop 1
    v_permlane32_swap_b32 v12, v13
    s_nop 1
    v_add_f32 v12, v12, v13
    v_cvt_pk_bf16_f32 v13, v12, 0
    v_lshlrev_b32 v14, 16, v13
    v_sub_f32 v14, v12, v14
    v_cvt_pk_bf16_f32 v12, v12, v14
    v_lshlrev_b32 v15, 4, v3
    s_lshl_b32 s26, s26, 10
    s_lshr_b32 s27, s25, 1
    s_lshl_b32 s27, s27, 9
    s_and_b32 s28, s25, 1
    s_lshl_b32 s28, s28, 3
    s_add_u32 s26, s26, s27
    s_add_u32 s26, s26, s28
    s_add_u32 s26, s26, {WS['CSF'][0]}
    buffer_store_dwordx2 v[12:13], v15, s[16:19], s26 offen sc1
    s_branch L_pf_e
    L_pf_b:
    s_sub_u32 s24, s2, 112
    s_cmp_ge_u32 s24, 98
    s_cselect_b32 s31, 32, 112
    s_mov_b32 s32, {WS['WD'][0]}
    s_cselect_b32 s32, {WS['WO'][0]}, s32
    s_cselect_b32 s33, 98, 0
    s_sub_u32 s24, s24, s33
    s_mul_i32 s25, s24, 9363
    s_lshr_b32 s25, s25, 16
    s_mul_i32 s26, s25, 7
    s_sub_u32 s24, s24, s26
    s_lshl_b32 s26, s25, 2
    s_add_u32 s26, s26, s3
    v_lshl_add_u32 v11, v5, 5, v6
    v_add_u32 v11, s28, v11
    s_lshl_b32 s24, s24, 1
    s_mul_i32 s27, s24, s31
    s_lshl_b32 s26, s26, 1
    s_add_u32 s27, s27, s26
    s_lshl_b32 s27, s27, 10
    s_add_u32 s27, s27, s32
    s_lshl_b32 s31, s31, 10
    s_add_u32 s28, s27, s31""")
    for t in range(2):
        for b in range(2):
            r = 16 + 8*t + 4*b
            a(f"ds_read_b64_tr_b16 v[{r}:{r+1}], v11 offset:{b*2048+t*64}")
            a(f"ds_read_b64_tr_b16 v[{r+2}:{r+3}], v11 offset:{b*2048+t*64+1024}")
    a.wait(lgkm=0)
    for t in range(2):
        for b in range(2):
            r = 16 + 8*t + 4*b
            a(f"buffer_store_dwordx4 v[{r}:{r+3}], v9, s[16:19], s{27+t} offen offset:{b*1024} sc1")
    a(f"""L_pf_e:
    s_lshr_b32 s38, s{SLOT}, 3
    s_add_u32 s38, s38, {F_PREP}
    s_or_b32 s39, s{NONCE}, s10
    v_mov_b32 v10, s39
    v_mov_b32 v1, 0
    s_waitcnt vmcnt(0)
    s_barrier
    s_cmp_lg_u32 s3, 0
    s_cbranch_scc1 L_pf_x
    s_mov_b64 exec, 1
    buffer_store_dword v10, v1, s[16:19], s38 offen sc1
    s_mov_b64 exec, -1
    L_pf_x:""")

LX, LS = 4*28672, 5*28672
def qkv_wsetup(a):
    a(f"""s_lshl_b32 s26, s26, 2
    s_add_u32 s26, s26, s3
    s_cmp_eq_u32 s26, 14
    s_cselect_b32 s20, s{PWK}, s{PWQ}
    s_cselect_b32 s21, s{PWK+1}, s{PWQ+1}
    s_cmp_eq_u32 s26, 15
    s_cselect_b32 s20, s{PWV}, s20
    s_cselect_b32 s21, s{PWV+1}, s21
    s_cmp_ge_u32 s26, 14
    s_mov_b32 s22, {D_*D_*2}
    s_cselect_b32 s22, {D_*DH*2}, s22
    s_cselect_b32 s33, {DH*2}, {D_*2}
    s_cselect_b32 s32, 0, s26
    s_mov_b32 s23, 0x20000
    s_lshl_b32 s32, s32, 6
    v_lshrrev_b32 v6, 2, v2
    v_and_b32 v8, 3, v2
    v_mul_lo_u32 v6, v6, s33
    v_lshl_add_u32 v6, v8, 4, v6
    s_lshl_b32 s33, s33, 4
    s_mul_i32 s25, s3, 28672
    s_mov_b32 m0, s25""")
def qkv_wdma(a):
    a("buffer_load_dwordx4 v6, s[20:23], s32 offen lds\ns_add_u32 m0, m0, 1024\ns_add_u32 s32, s32, s33")
def qkv(a, L):
    P = f"q{L}"
    rowmajor = (L == 0)
    roles_tt(a)
    if rowmajor:
        a.srd(20, PX, S_*D_*2)
        a(f"""v_mul_u32_u24 v5, {D_*2}, v3
        v_lshl_add_u32 v5, v4, 4, v5
        s_mul_i32 s27, s24, {32*D_*2}
        s_mul_i32 s32, s3, {7*32}
        s_add_u32 s27, s27, s32""")
        for i in range(7): a(f"buffer_load_dwordx4 v[{32+4*i}:{35+4*i}], v5, s[20:23], s27 offen offset:{32*i}")
        qkv_wsetup(a)
        for i in range(12): qkv_wdma(a)
        prep_setup(a)
        side = [lambda: qkv_wdma(a)]*16 + [(lambda i=i: prep_load(a, i)) for i in range(7)]
        nafter = 12
    else:
        qkv_wsetup(a)
        a(f"""s_lshr_b32 s36, s2, 6
        s_mul_i32 s36, s36, 7
        v_min_u32 v10, 13, v2
        v_lshrrev_b32 v11, 1, v10
        v_add_u32 v11, s36, v11
        v_and_b32 v10, 1, v10
        s_and_b32 s36, s24, 1
        s_lshl_b32 s36, s36, 1
        v_add_u32 v10, s36, v10""")
        slot_addr(a, 12, 11, 10)
        wait_flags(a, [(FL(F_D), 12, 14)])
        a(f's_mov_b32 s15, {LSTRIDE}')
        a.rt(1)
        a(f"""s_mul_i32 s27, s24, 28
        s_mul_i32 s36, s3, 7
        s_add_u32 s27, s27, s36
        s_lshl_b32 s27, s27, 10
        s_add_u32 s27, s27, {WS['X2'][0]}
        s_add_u32 s36, s27, 4096""")
        for i in range(7): a(f"buffer_load_dwordx4 v[{32+4*i}:{35+4*i}], v9, s[16:19], s{27 if i<4 else 36} offen offset:{1024*(i%4)} sc1")
        side = []; nafter = 0
    a(f"""v_bfe_u32 v10, v2, 2, 2
    v_lshl_add_u32 v10, v4, {3 if rowmajor else 2}, v10
    v_lshlrev_b32 v10, 6, v10
    v_bfe_u32 v11, v2, 4, 1
    v_lshl_add_u32 v10, v11, 5, v10
    v_lshl_add_u32 v10, v8, 3, v10
    v_add_u32 v10, s25, v10
    v_mov_b32 v12, 0
    v_mov_b32 v13, 0
    v_mov_b32 v14, 0
    v_mov_b32 v15, 0
    s_waitcnt vmcnt({nafter})""")
    ops = []
    for r in range(28):
        ops += split_lines(f"""v_lshlrev_b32 v{64+2*r}, 16, v{32+r}
        v_and_b32 v{65+2*r}, 0xffff0000, v{32+r}
        v_add_f32 v12, v12, v{64+2*r}
        v_fmac_f32 v13, v{64+2*r}, v{64+2*r}
        v_add_f32 v14, v14, v{65+2*r}
        v_fmac_f32 v15, v{65+2*r}, v{65+2*r}""")
    interleave(a, ops, side[:14], 12)
    a(f"""v_add_f32 v12, v12, v14
    v_add_f32 v13, v13, v15
    s_lshl_b32 s36, s3, 9
    v_lshlrev_b32 v14, 3, v2
    s_add_u32 s36, s36, {LS - 1024}
    v_add_u32 v15, s36, v14
    ds_write_b64 v15, v[12:13]
    v_lshlrev_b32 v14, 3, v3
    v_add_u32 v14, {LS - 1024}, v14
    v_add_u32 v8, {LX}, v9
    s_waitcnt lgkmcnt(0)
    s_barrier""")
    for i in range(8): a(f"ds_read_b64 v[{16+2*i}:{17+2*i}], v14 offset:{256*i}")
    for t in side[14:16]: t()
    a("s_waitcnt lgkmcnt(0)\ns_barrier")
    for i in range(1, 8): a(f"v_add_f32 v16, v16, v{16+2*i}\nv_add_f32 v17, v17, v{17+2*i}")
    a(f"""v_mul_f32 v16, {hex(f2u(1.0/D_))}, v16
    v_mul_f32 v17, {hex(f2u(1.0/D_))}, v17
    v_fma_f32 v17, -v16, v16, v17
    v_max_f32 v17, 0, v17
    v_add_f32 v17, {hex(f2u(1e-5))}, v17
    v_rsq_f32 v17, v17
    s_mul_i32 s36, s3, 7168
    v_add_u32 v15, s36, v8
    v_mul_f32 v16, v16, v17""")
    for i in range(7):
        for r in range(4):
            q = 64 + 8*i + 2*r
            a(f"""v_fma_f32 v{q}, v{q}, v17, -v16
            v_fma_f32 v{q+1}, v{q+1}, v17, -v16
            v_cvt_pk_bf16_f32 v{32+4*i+r}, v{q}, v{q+1}""")
        a(f"ds_write_b128 v15, v[{32+4*i}:{35+4*i}] offset:{1024*i}")
        if 16 + i < len(side): side[16+i]()
    a(f"s_waitcnt vmcnt({7 if rowmajor else 0}) lgkmcnt(0)\ns_barrier")
    second = 256 if rowmajor else 512
    def rd(ks):
        j = 32 + 8*(ks % 4)
        a(f"""ds_read_b64_tr_b16 v[{j}:{j+1}], v10 offset:{ks*1024}
        ds_read_b64_tr_b16 v[{j+2}:{j+3}], v10 offset:{ks*1024+second}
        ds_read_b128 v[{j+4}:{j+7}], v8 offset:{ks*1024}""")
    def loop(swap):
        for ks in range(3): rd(ks)
        for ks in range(28):
            if ks + 3 < 28: rd(ks + 3)
            a.wait(lgkm=3*min(3, 27-ks))
            j = 32 + 8*(ks % 4)
            x, y = (f"v[{j+4}:{j+7}]", f"v[{j}:{j+3}]") if swap else (f"v[{j}:{j+3}]", f"v[{j+4}:{j+7}]")
            a(f"v_mfma_f32_32x32x16_bf16 v[64:79], {x}, {y}, {'0' if ks==0 else 'v[64:79]'}")
    def tilenorm():
        a("v_dot2_f32_bf16 v12, v32, v32, 0")
        for r in range(1, 8): a(f"v_dot2_f32_bf16 v12, v{32+r}, v{32+r}, v12")
        a("s_nop 2\nv_mov_b32 v13, v12\ns_nop 1\nv_permlane32_swap_b32 v12, v13\ns_nop 1\nv_add_f32 v12, v12, v13")
        for sh in (1, 2, 4, 8): a(f"s_nop 1\nv_max_f32_dpp v12, v12, v12 row_shr:{sh} row_mask:0xf bank_mask:0xf")
        a("s_nop 1\nv_readlane_b32 s36, v12, 15\nv_readlane_b32 s37, v12, 31\ns_nop 3\ns_max_u32 s36, s36, s37")
    a(f"s_cmp_eq_u32 s26, 15\ns_cbranch_scc1 {P}_v")
    loop(False)
    a(f"s_cmp_eq_u32 s26, 14\ns_cbranch_scc1 {P}_k")
    a(f"""s_lshl_b32 s27, s24, 15
    s_add_u32 s27, s27, {WS['Q%d'%L][0]}
    s_lshl_b32 s32, s26, 3
    v_add_u32 v5, s32, v4
    s_mov_b32 s33, 9363
    s_mov_b32 s32, {hex(QSCALE)}""")
    for g in range(4):
        a(f"""v_add_u32 v6, {2*g}, v5
        v_mul_u32_u24 v7, s33, v6
        v_lshrrev_b32 v7, 16, v7
        v_mul_u32_u24 v11, 7, v7
        v_sub_u32 v6, v6, v11
        v_lshlrev_b32 v7, 11, v7
        v_lshrrev_b32 v11, 2, v6
        v_lshl_add_u32 v7, v11, 10, v7
        v_and_b32 v11, 1, v6
        v_lshl_add_u32 v7, v11, 9, v7
        v_bfe_u32 v11, v6, 1, 1
        v_lshl_add_u32 v7, v11, 3, v7
        v_lshl_add_u32 v{16+g}, v3, 4, v7""")
    for g in range(4):
        for i in range(4): a(f"v_mul_f32 v{64+4*g+i}, s32, v{64+4*g+i}")
        a(f"""v_cvt_pk_bf16_f32 v{32+2*g}, v{64+4*g}, v{65+4*g}
        v_cvt_pk_bf16_f32 v{33+2*g}, v{66+4*g}, v{67+4*g}
        """)
    lst(a, [f"buffer_store_dwordx2 v[{32+2*g}:{33+2*g}], v{16+g}, s[16:19], s27 offen" for g in range(4)])
    tilenorm()
    if L == 0: get_nonce(a)
    signal(a, FL(F_Q), "s36")
    a(f"s_branch {P}_fin\n{P}_k:")
    a(f"""s_lshl_b32 s27, s24, 12
    s_add_u32 s27, s27, {WS['KV%d'%L][0]}
    v_mov_b32 v13, 0x3f803f80
    v_mov_b32 v14, 0x3f80
    s_nop 7""")
    for r in range(8): a(f"v_cvt_pk_bf16_f32 v{32+r}, v{64+2*r}, v{65+2*r}")
    a(f"""v_cndmask_b32 v42, v38, v13, s[62:63]
    v_cndmask_b32 v43, v39, v14, s[62:63]
    v_mov_b32 v40, v36
    v_mov_b32 v41, v37
    buffer_store_dwordx4 v[32:35], v9, s[16:19], s27 offen sc1
    buffer_store_dwordx4 v[40:43], v9, s[16:19], s27 offen offset:1024 sc1
    v_cndmask_b32 v38, v38, 0, s[62:63]
    v_cndmask_b32 v39, v39, 0, s[62:63]""")
    tilenorm()
    a(f"s_branch {P}_end\n{P}_v:")
    loop(True)
    a(f"""s_lshl_b32 s27, s24, 12
    s_add_u32 s27, s27, {WS['KV%d'%L][0]}
    v_cmp_eq_u32 vcc, 28, v3
    v_mov_b32 v13, 0x3f803f80
    s_mov_b32 s36, 0
    v_cndmask_b32 v13, 0, v13, vcc
    v_cmp_lt_u32 vcc, 27, v3
    s_nop 7""")
    for r in range(8): a(f"v_cvt_pk_bf16_f32 v{32+r}, v{64+2*r}, v{65+2*r}")
    for r in range(8): a(f"v_cndmask_b32 v{32+r}, v{32+r}, v13, vcc")
    a(f"""buffer_store_dwordx4 v[32:35], v9, s[16:19], s27 offen offset:2048 sc1
    buffer_store_dwordx4 v[36:39], v9, s[16:19], s27 offen offset:3072 sc1
    {P}_end:""")
    if L == 0: get_nonce(a)
    signal(a, FL(F_KV), "s36", local=False)
    a(f"{P}_fin:")
    a.rt(2)
    if L == 0:
        roles_o(a)
        a.srd(20, PX, S_*D_*2)
        rm_addr(a)
        for g in range(4): a(f"buffer_load_dwordx2 a[{RES+2*g}:{RES+1+2*g}], v5, s[20:23], s37 offen offset:{16*g}")
        prep_finish(a)
    else: a("s_barrier")

QB, KVB, SB, EB, PB, OB = 16, 48, 112, 144, 160, 168
WOA, WDA, NWD = 0, 112, 17
KORD = [7*c + t for c in range(4) for t in range(4)] + [7*c + t for c in range(4) for t in range(4, 7)]
def mf(d, x, y, c): return f"v_mfma_f32_32x32x16_bf16 v[{d}:{d+15}], v[{x}:{x+3}], v[{y}:{y+3}], " + (c if isinstance(c, str) else f"v[{c}:{c+15}]")
def wmax(a, r, dst):
    for sh in (1, 2, 4, 8): a(f"s_nop 1\nv_max_f32_dpp v{r}, v{r}, v{r} row_shr:{sh} row_mask:0xf bank_mask:0xf")
    a(f"""s_nop 1
    v_readlane_b32 s36, v{r}, 15
    v_readlane_b32 s37, v{r}, 31
    v_readlane_b32 s38, v{r}, 47
    v_readlane_b32 s39, v{r}, 63
    s_nop 3
    s_max_u32 s36, s36, s37
    s_max_u32 s38, s38, s39
    s_max_u32 s{dst}, s36, s38""")
def att(a):
    vm = Ctr(a, "vmcnt", 63)
    roles_o(a)
    a(f"""s_lshl_b32 s36, s3, 3
    s_lshl_b32 s96, s25, 5
    s_lshl_b32 s97, s27, 5
    s_add_u32 s96, s96, s36
    s_add_u32 s97, s97, s36
    s_lshl_b32 s96, s96, 10
    s_lshl_b32 s97, s97, 10
    s_add_u32 s96, s96, {WS['WO'][0]}
    s_add_u32 s97, s97, {WS['WO'][0]}
    s_mul_i32 s36, s3, 28
    s_mul_i32 s98, s25, 112
    s_mul_i32 s99, s27, 112
    s_add_u32 s98, s98, s36
    s_add_u32 s99, s99, s36
    s_lshl_b32 s98, s98, 10
    s_lshl_b32 s99, s99, 10
    s_add_u32 s98, s98, {WS['WD'][0]}
    s_add_u32 s99, s99, {WS['WD'][0]}
    s_and_b32 s100, s11, 15
    s_mul_i32 s100, s100, {7*28672}
    s_mul_i32 s101, s3, 7168
    s_add_u32 s100, s100, s101
    s_add_u32 s100, s100, {WS['WGU'][0]}""")
    roles_tt(a)
    a(f"""s_lshl_b32 s27, s3, 16
    s_add_u32 s27, s27, s15
    s_add_u32 s27, s27, {WS['KV0'][0]}
    s_add_u32 s20, s12, s27
    s_addc_u32 s21, s13, 0
    s_mov_b32 s22, 65536
    s_mov_b32 s23, 0x20000
    v_lshlrev_b32 v12, 7, v2
    v_add_u32 v12, {112 + FL(F_KV) - FL(F_Q)}, v12
    v_and_b32 v10, 15, v2
    s_lshl_b32 s36, s3, 4
    v_add_u32 v10, s36, v10
    v_lshlrev_b32 v10, 7, v10
    v_add_u32 v10, {120 + FL(F_KV) - FL(F_Q)}, v10
    s_mul_i32 s36, s26, 7
    s_lshr_b32 s36, s36, 1
    v_and_b32 v11, 3, v2
    v_add_u32 v11, s36, v11
    s_lshl_b32 s36, s24, 7
    v_lshl_add_u32 v11, v11, 3, s36
    v_cmp_gt_u32 vcc, 16, v2
    v_lshlrev_b32 v8, 2, v2
    s_lshl_b32 s27, s24, 15
    v_cndmask_b32 v13, v11, v10, vcc
    s_add_u32 s27, s27, s15
    s_add_u32 s27, s27, {WS['Q0'][0]}""")
    for r in range(64): a(f"v_mov_b32 v{OB+r}, 0")
    for r in range(4): a(f"v_mov_b32 v{KVB+60+r}, 0\nv_mov_b32 v{EB+12+r}, 0")
    a(f"v_mov_b32 v{PB+4}, 0\nv_mov_b32 v{PB+5}, 0")
    wait_flags(a, [(FL(F_Q), 12, 14), (FL(F_Q), 13, 10)])
    a.rt(3)
    def kvload(kt, p):
        r = KVB + 16*(kt % 4) + 4*p
        vm.issue(("kv", kt, p), f"buffer_load_dwordx4 v[{r}:{r+3}], v9, s[20:23], s30 offen offset:{1024*p} sc1")
        if p == 3: a("s_add_u32 s30, s30, 4096")
    def qload(i):
        a(f"""s_add_u32 s28, s3, {i}
        s_and_b32 s28, s28, 3
        s_lshl_b32 s29, s26, 2
        s_add_u32 s28, s28, s29
        s_lshl_b32 s28, s28, 11
        s_add_u32 s28, s28, s27""")
        for p in range(2): vm.issue(("q", i), f"buffer_load_dwordx4 v[{QB+8*i+4*p}:{QB+8*i+4*p+3}], v9, s[16:19], s28 offen offset:{1024*p} sc1")
    a("s_mov_b32 s30, 0")
    qload(0); kvload(0, 0); kvload(0, 1); qload(1); kvload(0, 2); kvload(0, 3); qload(2); qload(3)
    for kt in (1, 2):
        for p in range(4): kvload(kt, p)
    wmax(a, 15, 34); wmax(a, 11, 35)
    a(f"""v_mov_b32 v10, s34
    v_mul_f32 v10, s35, v10
    v_cmp_nge_f32 vcc, {hex(f2u(TB*TB/2))}, v10""")
    vm.wait(("q", 3))
    for i in range(4):
        a(f"v_cndmask_b32 v{QB+8*i+6}, v{QB+8*i+6}, 0, s[62:63]\nv_cndmask_b32 v{QB+8*i+7}, v{QB+8*i+7}, 0, s[62:63]")
    a("s_cbranch_vccz A_go")
    for i in range(4): a(f"v_mov_b32 v{EB+i}, 0xff800000")
    T = KVB + 48
    a(f"""s_mov_b32 s36, 0
    A_mx:
    buffer_load_dwordx4 v[{T}:{T+3}], v9, s[20:23], s36 offen sc1
    buffer_load_dwordx4 v[{T+4}:{T+7}], v9, s[20:23], s36 offen offset:1024 sc1
    s_waitcnt vmcnt(0)""")
    for i in range(4):
        a(mf(SB, T, QB+8*i, "0")); a(mf(SB, T+4, QB+8*i+4, SB)); a("s_nop 15")
        for r in range(8): a(f"v_max3_f32 v{EB+i}, v{EB+i}, v{SB+2*r}, v{SB+2*r+1}")
    a("s_add_u32 s36, s36, 4096\ns_cmp_lt_u32 s36, 65536\ns_cbranch_scc1 A_mx")
    for i in range(4):
        a(f"""s_add_u32 s28, s3, {i}
        s_and_b32 s28, s28, 3
        s_lshl_b32 s28, s28, 10
        s_add_u32 s28, s28, {RED}
        s_lshl_b32 s29, s3, 8
        s_add_u32 s29, s29, s28
        v_add_u32 v6, s29, v8
        ds_write_b32 v6, v{EB+i}
        v_lshl_add_u32 v{EB+4+i}, v3, 2, s28""")
    a("s_waitcnt lgkmcnt(0)\ns_barrier")
    for i in range(4):
        for p in range(8): a(f"ds_read_b32 v{SB+p}, v{EB+4+i} offset:{128*p}")
        a(f"""s_waitcnt lgkmcnt(0)
        v_max3_f32 v{SB}, v{SB}, v{SB+1}, v{SB+2}
        v_max3_f32 v{SB}, v{SB}, v{SB+3}, v{SB+4}
        v_max3_f32 v{SB}, v{SB}, v{SB+5}, v{SB+6}
        v_max_f32 v{SB}, v{SB}, v{SB+7}
        v_sub_f32 v{SB}, 0, v{SB}
        v_cvt_pk_bf16_f32 v{SB+1}, v{SB}, 0
        v_lshlrev_b32 v{SB+2}, 16, v{SB+1}
        v_sub_f32 v{SB+2}, v{SB}, v{SB+2}
        v_cvt_pk_bf16_f32 v{SB+1}, v{SB}, v{SB+2}
        v_and_b32 v{SB+3}, 0xffff0000, v{SB+1}
        v_sub_f32 v{SB+2}, v{SB+2}, v{SB+3}
        v_cvt_pk_bf16_f32 v{SB+2}, v{SB+2}, 0
        v_cndmask_b32 v{QB+8*i+6}, v{QB+8*i+6}, v{SB+1}, s[62:63]
        v_cndmask_b32 v{QB+8*i+7}, v{QB+8*i+7}, v{SB+2}, s[62:63]""")
    a("s_barrier\nA_go:")
    a(mf(SB, KVB, QB, "0")); a(mf(SB, KVB+4, QB+4, SB))
    a(f"s_mov_b32 s31, {F_PREP}\ns_nop 7\ns_nop 3")
    a.rt(4)
    side = []
    def ldA(reg, s, off): side.append(lambda: vm.issue("pf", f"buffer_load_dwordx4 a[{reg}:{reg+3}], v9, s[16:19], s{s} offen offset:{off} sc1"))
    def sa(txt):
        f = side.pop(); side.append(lambda: (a(txt), f()))
    for k in range(8):
        for p in range(2):
            ldA(WOA + 8*k + 4*p, 96+p, 1024*(k % 4))
            if k == 4: sa(f"s_add_u32 s{96+p}, s{96+p}, 4096")
    for t in range(4):
        for i in range(7):
            side.append(lambda i=i: vm.issue("pf", f"buffer_load_dwordx4 v9, s[16:19], s100 offen offset:{1024*(i%4)} sc1 lds"))
            if i == 0: sa(f"s_add_u32 m0, s101, {t*28672}" + (f"\ns_add_u32 s100, s100, {28672-4096}" if t else ""))
            if i == 4: sa("s_add_u32 m0, m0, 4096\ns_add_u32 s100, s100, 4096")
    cur = 0
    for n in range(NWD):
        base = KORD[n] - (n % 4 if n < 16 else (n-16) % 3)
        for p in range(2):
            ldA(WDA + 8*n + 4*p, 98+p, 1024*(KORD[n]-base))
            if base != cur: sa(f"s_add_u32 s{98+p}, s{98+p}, {(1024*(base-cur)) & 0xffffffff}")
        cur = base
    def e(i, sb): a(f"v_exp_f32 v{EB+i}, v{sb+i}")
    def c(p): a(f"v_cvt_pk_bf16_f32 v{PB+p}, v{EB+2*p}, v{EB+2*p+1}")
    def sd(u):
        if u >= 12 and side: side.pop(0)()
    for u in range(64):
        kt, qi = u // 4, u % 4
        sc, sn = SB + 16*(u % 2), SB + 16*((u+1) % 2)
        nk, nq = (kt, qi+1) if qi < 3 else (kt+1, 0)
        pk, pq = (kt, qi-1) if qi > 0 else (kt-1, 3)
        Kn = KVB + 16*(nk % 4)
        if qi == 3: vm.wait(("kv", kt+1, 3))
        if u == 11:
            vm.wait("pfl")
            a(f"""v_and_b32 v236, -16, v232
            v_and_b32 v237, -16, v233
            v_and_b32 v238, -16, v234
            v_and_b32 v239, -16, v235
            v_cmp_ne_u32 vcc, s{NONCE}, v236
            v_cmp_ne_u32 s[36:37], s{NONCE}, v237
            v_cmp_ne_u32 s[38:39], s{NONCE}, v238
            v_cmp_ne_u32 s[32:33], s{NONCE}, v239
            s_or_b64 vcc, vcc, s[36:37]
            s_nop 0
            s_or_b64 s[38:39], s[38:39], s[32:33]
            s_or_b64 vcc, vcc, s[38:39]
            s_cbranch_scc1 A_pw
            A_pb:
            s_or_b32 s34, s{NONCE}, s10
            v_cmp_ne_u32 vcc, s34, v232
            v_cmp_ne_u32 s[36:37], s34, v233
            v_cmp_ne_u32 s[38:39], s34, v234
            v_cmp_ne_u32 s[32:33], s34, v235
            s_or_b64 vcc, vcc, s[36:37]
            s_and_b32 s34, s2, 7
            s_or_b64 s[38:39], s[38:39], s[32:33]
            s_lshl_b32 s34, s34, 3
            s_or_b64 vcc, vcc, s[38:39]
            s_lshr_b64 vcc, vcc, s34
            s_and_b32 s34, vcc_lo, 0xff
            s_cselect_b32 s{MODE}, 0, {FAST}""")
        if u < 63: a(mf(sn, Kn, QB+8*nq, "0"))
        e(0, sc); c(6); e(1, sc); c(7); e(2, sc); sd(u); e(3, sc)
        if u < 63: a(mf(sn, Kn+4, QB+8*nq+4, sn))
        e(4, sc); c(0); e(5, sc); c(1); e(6, sc)
        if u == 5: vm.issue("pfl", "buffer_load_dwordx4 v[232:235], v9, s[16:19], s31 offen sc1")
        e(7, sc)
        a(mf(OB+16*pq, KVB+16*(pk % 4)+12, PB+4, OB+16*pq))
        e(8, sc)
        if qi == 1 and kt + 3 < 16: kvload(kt+3, 0)
        c(2); e(9, sc)
        if qi == 1 and kt + 3 < 16: kvload(kt+3, 1)
        c(3); e(10, sc)
        if qi == 1 and kt + 3 < 16: kvload(kt+3, 2)
        e(11, sc)
        if qi == 1 and kt + 3 < 16: kvload(kt+3, 3)
        a(mf(OB+16*qi, KVB+16*(kt % 4)+8, PB, OB+16*qi))
        e(12, sc); c(4); e(13, sc); c(5); e(14, sc)
        if qi != 1: sd(u)
        e(15, sc)
    assert not side, len(side)
    a.rt(5)
    c(6); c(7)
    for i in range(1, 4):
        a(f"""s_add_u32 s28, s3, {i}
        s_and_b32 s28, s28, 3
        s_mul_i32 s28, s28, 12288
        s_add_u32 s28, s28, {RED}
        v_add_u32 v{10+i}, s28, v9""")
    a(mf(OB+48, KVB+48+12, PB+4, OB+48))
    a(f"s_mul_i32 s28, s3, 12288\ns_add_u32 s28, s28, {RED}\nv_add_u32 v10, s28, v9")
    for i in range(1, 4):
        if i == 3: a("s_nop 7")
        for p in range(4):
            r = OB + 16*i + 4*p
            a(f"ds_write_b128 v{10+i}, v[{r}:{r+3}] offset:{(i-1)*4096+p*1024}")
    a(f"""s_lshl_b32 s27, s24, 5
    s_lshl_b32 s28, s26, 2
    s_add_u32 s28, s28, s3
    s_lshl_b32 s28, s28, 1
    s_add_u32 s27, s27, s28
    s_lshl_b32 s27, s27, 10
    s_add_u32 s27, s27, s15
    s_add_u32 s27, s27, {WS['O0'][0]}
    s_waitcnt lgkmcnt(0)
    s_barrier""")
    for i in range(12):
        r = OB + 16 + 4*i
        a(f"ds_read_b128 v[{r}:{r+3}], v10 offset:{i*1024}")
    for i in range(3):
        a.wait(lgkm=8-4*i)
        for r in range(16): a(f"v_add_f32 v{OB+r}, v{OB+r}, v{OB+16+16*i+r}")
    a(f"""v_mov_b32 v11, v{OB+12}
    v_mov_b32 v12, v{OB+12}
    s_nop 1
    v_permlane32_swap_b32 v11, v12
    s_nop 1
    v_rcp_f32 v12, v12
    s_nop 0""")
    for r in range(16): a(f"v_mul_f32 v{OB+r}, v{OB+r}, v12")
    for r in range(8): a(f"v_cvt_pk_bf16_f32 v{PB+r}, v{OB+2*r}, v{OB+2*r+1}")
    a(f"""v_cndmask_b32 v{PB+6}, v{PB+6}, 0, s[62:63]
    v_cndmask_b32 v{PB+7}, v{PB+7}, 0, s[62:63]""")
    lst(a, [f"buffer_store_dwordx4 v[{PB}:{PB+3}], v9, s[16:19], s27 offen", f"buffer_store_dwordx4 v[{PB+4}:{PB+7}], v9, s[16:19], s27 offen offset:1024"])
    signal(a, FL(F_ATT))
    a.rt(6)
    a("s_barrier")
def att_cold(a):
    a(f"""A_pw:
    s_mov_b32 s34, {SPIN}
    A_pw1:
    buffer_load_dwordx4 v[232:235], v9, s[16:19], s31 offen sc1
    s_waitcnt vmcnt(0)
    v_and_b32 v236, -16, v232
    v_and_b32 v237, -16, v233
    v_and_b32 v238, -16, v234
    v_and_b32 v239, -16, v235
    v_cmp_ne_u32 vcc, s{NONCE}, v236
    v_cmp_ne_u32 s[36:37], s{NONCE}, v237
    v_cmp_ne_u32 s[38:39], s{NONCE}, v238
    v_cmp_ne_u32 s[32:33], s{NONCE}, v239
    s_or_b64 vcc, vcc, s[36:37]
    s_nop 0
    s_or_b64 s[38:39], s[38:39], s[32:33]
    s_or_b64 vcc, vcc, s[38:39]
    s_cbranch_scc0 A_pb
    s_sub_u32 s34, s34, 1
    s_cmp_lg_u32 s34, 0
    s_cbranch_scc1 A_pw1
    s_branch A_pb""")

def red_addr(a):
    for i in range(4):
        a(f"""s_xor_b32 s39, s3, {i}
        s_mul_i32 s39, s39, 12288
        s_add_u32 s39, s39, {RED}
        v_add_u32 v{10+i}, s39, v9""")
def reduce4(a, acc, T):
    for i in range(1, 4):
        if i == 3: a("s_nop 7")
        for p in range(4): a(f"ds_write_b128 v{10+i}, {R(acc+16*i+4*p, 4)} offset:{(i-1)*4096+p*1024}")
    for r in range(8):
        a(f"""v_accvgpr_read_b32 v14, a{RES+r}
        v_lshlrev_b32 v15, 16, v14
        v_and_b32 v14, 0xffff0000, v14""")
        if acc >= 256:
            a(f"""v_accvgpr_read_b32 v{T+2*r}, a{acc-256+2*r}
            v_accvgpr_read_b32 v{T+2*r+1}, a{acc-256+2*r+1}
            v_add_f32 v{T+2*r}, v{T+2*r}, v15
            v_add_f32 v{T+2*r+1}, v{T+2*r+1}, v14""")
        else:
            a(f"v_add_f32 v{T+2*r}, v{acc+2*r}, v15\nv_add_f32 v{T+2*r+1}, v{acc+2*r+1}, v14")
    a("s_waitcnt lgkmcnt(0)\ns_barrier")
    for i in range(12): a(f"ds_read_b128 v[{T+16+4*i}:{T+19+4*i}], v10 offset:{i*1024}")
    for i in range(3):
        a.wait(lgkm=8-4*i)
        for r in range(16): a(f"v_add_f32 v{T+r}, v{T+r}, v{T+16+16*i+r}")
    for r in range(8): a(f"v_cvt_pk_bf16_f32 v{T+16+r}, v{T+2*r}, v{T+2*r+1}")
def xstore(a, T, name):
    a(f"""s_mul_i32 s38, s24, 28
    s_lshl_b32 s39, s25, 1
    s_add_u32 s38, s38, s39
    s_lshl_b32 s38, s38, 10
    s_add_u32 s38, s38, s15
    s_add_u32 s38, s38, {WS[name][0]}""")
    lst(a, [f"buffer_store_dwordx4 v[{T+16+4*j}:{T+19+4*j}], v9, s[16:19], s38 offen offset:{1024*j}" for j in range(2)])
def keep_res(a, T):
    for r in range(8): a(f"v_accvgpr_write_b32 a{RES+r}, v{T+16+r}")

def oproj(a):
    vm = Ctr(a, "vmcnt", 63)
    roles_o(a)
    a(f"""s_cmp_ge_u32 s11, 28
    s_cbranch_scc1 O_skip
    s_and_b32 s36, s24, 6
    v_bfe_u32 v10, v2, 2, 1
    v_add_u32 v10, s36, v10
    v_lshl_add_u32 v11, v10, 2, s3
    v_and_b32 v10, 3, v2""")
    slot_addr(a, 14, 11, 10)
    a(f"""s_lshl_b32 s36, s3, 3
    s_lshl_b32 s30, s24, 5
    s_lshl_b32 s31, s26, 5
    s_add_u32 s30, s30, s36
    s_add_u32 s31, s31, s36
    s_lshl_b32 s30, s30, 10
    s_lshl_b32 s31, s31, 10
    s_add_u32 s36, s15, {WS['O0'][0]}
    s_add_u32 s30, s30, s36
    s_add_u32 s31, s31, s36""")
    red_addr(a)
    wait_flags(a, [(FL(F_ATT), 14, 16)])
    a.rt(7)
    AC, FB = 16, 80
    for k in range(8):
        for ib in range(2):
            r = FB + 8*k + 4*ib
            if k == 4: a(f"s_add_u32 s{30+ib}, s{30+ib}, 4096")
            vm.issue((k, ib), f"buffer_load_dwordx4 v[{r}:{r+3}], v9, s[16:19], s{30+ib} offen offset:{1024*(k%4)} sc1")
    for k in range(8):
        for ib in range(2):
            vm.wait((k, ib))
            for ia in range(2):
                t = AC + 16*(2*ib + ia); w = WOA + 8*k + 4*ia; r = FB + 8*k + 4*ib
                a(f"v_mfma_f32_32x32x16_bf16 v[{t}:{t+15}], a[{w}:{w+3}], v[{r}:{r+3}], {'0' if k==0 else 'v[%d:%d]'%(t,t+15)}")
    a("s_nop 3")
    T = FB
    reduce4(a, AC, T)
    xstore(a, T, 'XO0')
    a(f"v_add_f32 v24, v{T}, v{T+1}\nv_mul_f32 v25, v{T}, v{T}\nv_fmac_f32 v25, v{T+1}, v{T+1}")
    for r in range(2, 16): a(f"v_add_f32 v24, v24, v{T+r}\nv_fmac_f32 v25, v{T+r}, v{T+r}")
    a(f"""v_mov_b32 v26, v24
    v_mov_b32 v27, v25
    s_mul_i32 s38, s24, 14
    s_add_u32 s38, s38, s25
    v_permlane32_swap_b32 v24, v26
    v_permlane32_swap_b32 v25, v27
    s_lshl_b32 s38, s38, 8
    s_add_u32 s38, s38, s15
    s_add_u32 s38, s38, {WS['ST0'][0]}
    v_add_f32 v24, v24, v26
    v_add_f32 v25, v25, v27
    v_lshlrev_b32 v6, 3, v3""")
    lst(a, "buffer_store_dwordx2 v[24:25], v6, s[16:19], s38 offen")
    keep_res(a, T)
    signal(a, FL(F_O))
    a("s_barrier\nO_skip:")
    a.rt(8)

ACC, WF, CS, TMP = 16, 128, 160, 192
NA = 4
def gu(a):
    vm = Ctr(a, "vmcnt", 63); lg = Ctr(a, "lgkmcnt", 15)
    a(f"""s_and_b32 s24, s2, 7
    s_lshr_b32 s26, s2, 7
    s_lshl_b32 s26, s26, 2
    s_add_u32 s26, s26, s3
    s_lshl_b32 s24, s24, 3
    s_add_u32 s24, s24, s26
    s_bfe_u32 s25, s2, 0x40003
    s_lshr_b32 s36, s26, 1
    s_mul_i32 s36, s36, 7
    v_min_u32 v10, 13, v2
    v_lshrrev_b32 v11, 1, v10
    v_add_u32 v11, s36, v11
    v_and_b32 v10, 1, v10
    s_and_b32 s36, s26, 1
    s_lshl_b32 s36, s36, 1
    v_add_u32 v10, s36, v10""")
    slot_addr(a, 14, 11, 10)
    a(f"""s_mul_i32 s26, s24, {28*1024}
    s_add_u32 s26, s26, s15
    s_add_u32 s26, s26, {WS['XO0'][0]}
    s_mul_i32 s28, s3, 7168
    s_mul_i32 s27, s25, {7*28672}
    s_add_u32 s27, s27, s28
    s_add_u32 s27, s27, {WS['WGU'][0]}
    v_mov_b32 v10, v9
    v_add_u32 v11, {2*28672}, v9
    v_add_u32 v12, {4*28672}, v9
    v_mul_u32_u24 v5, {7*256}, v4
    v_lshl_add_u32 v5, v3, 3, v5
    s_mul_i32 s30, s24, {14*256}
    s_add_u32 s30, s30, s15
    s_add_u32 s30, s30, {WS['ST0'][0]}
    s_mul_i32 s31, s25, {7*1024}
    s_add_u32 s31, s31, {WS['CSF'][0]}
    s_add_u32 s32, s31, 4096
    s_mul_i32 s33, s24, 112
    s_mul_i32 s34, s25, 7
    s_add_u32 s33, s33, s34
    s_lshl_b32 s33, s33, 10
    s_add_u32 s33, s33, s15
    s_add_u32 s33, s33, {WS['H0'][0]}
    s_add_u32 s34, s33, 4096""")
    def dma(t, i):
        if i % 4 == 0: a(f"s_add_u32 m0, s28, {(t % 5)*28672 + i*1024}\ns_add_u32 s29, s27, {t*28672 + i*1024}")
        vm.issue(("w", t, i), f"buffer_load_dwordx4 v9, s[16:19], s29 offen offset:{1024*(i%4)} sc1 lds")
    def xld(ks):
        vm.issue(("x", ks), f"buffer_load_dwordx4 a[{4*ks}:{4*ks+3}], v9, s[16:19], s26 offen offset:{1024*(ks%4)} sc1")
        if ks % 4 == 3: a("s_add_u32 s26, s26, 4096")
    def rd(t, ks, reg):
        slot = t % 5
        lg.issue(("r", t, ks), f"ds_read_b128 v[{reg}:{reg+3}], v{10+slot//2} offset:{(slot%2)*28672 + ks*1024}")
    def mfma(t, reg, ks):
        d = ACC + 16*t
        a(f"v_mfma_f32_32x32x16_bf16 v[{d}:{d+15}], v[{reg}:{reg+3}], a[{4*ks}:{4*ks+3}], {'0' if ks==0 else 'v[%d:%d]'%(d,d+15)}")
    def csmfma(t):
        d = ACC + 16*t
        a(f"v_mfma_f32_32x32x16_bf16 v[{d}:{d+15}], v[{CS+4*t}:{CS+4*t+3}], v[{TMP}:{TMP+3}], v[{d}:{d+15}]")
    SIG, C1 = TMP+4, TMP+5
    def stats_ops():
        o = []; S0 = TMP + 8
        for i in range(1, 7): o += [f"v_add_f32 v{S0}, v{S0}, v{S0+2*i}", f"v_add_f32 v{S0+1}, v{S0+1}, v{S0+2*i+1}"]
        o += [f"v_mov_b32 v{S0+2}, v{S0}", f"v_mov_b32 v{S0+3}, v{S0+1}", "s_nop 1",
              f"v_permlane32_swap_b32 v{S0}, v{S0+2}", f"v_permlane32_swap_b32 v{S0+1}, v{S0+3}", "s_nop 1",
              f"v_add_f32 v{S0}, v{S0}, v{S0+2}", f"v_add_f32 v{S0+1}, v{S0+1}, v{S0+3}",
              f"v_mul_f32 v{S0}, {hex(f2u(-1.0/D_))}, v{S0}", f"v_mul_f32 v{S0+1}, {hex(f2u(1.0/D_))}, v{S0+1}",
              f"v_fma_f32 v{S0+1}, -v{S0}, v{S0}, v{S0+1}", f"v_max_f32 v{S0+1}, 0, v{S0+1}",
              f"v_add_f32 v{S0+1}, {hex(f2u(1e-5))}, v{S0+1}",
              f"v_cvt_pk_bf16_f32 v{TMP}, v{S0}, v{S0}", f"v_rsq_f32 v{C1}, v{S0+1}",
              f"v_and_b32 v{S0+2}, 0xffff0000, v{TMP}", f"v_mul_f32 v{SIG}, v{S0+1}, v{C1}",
              f"v_sub_f32 v{S0+2}, v{S0}, v{S0+2}", f"v_mul_f32 v{C1}, {hex(f2u(-math.log2(math.e)))}, v{C1}",
              f"v_cvt_pk_bf16_f32 v{TMP+1}, v{S0+2}, 0", f"v_mov_b32 v{TMP+2}, v{TMP}", f"v_mov_b32 v{TMP+3}, v{TMP+1}"]
        return [(x, 4) for x in o]
    def epi_ops(t):
        d = ACC + 16*t; E = TMP + 24; P = TMP + 32 + 4*(t % 2)
        o = []
        for half in range(2):
            js = range(4*half, 4*half+4)
            o += [(f"v_mul_f32 v{E+j}, v{C1}, v{d+j}", 4) for j in js]
            o += [(f"v_exp_f32 v{E+j}, v{E+j}", 8) for j in js]
            o += [(f"v_fma_f32 v{E+j}, v{E+j}, v{SIG}, v{SIG}", 4) for j in js]
            o += [(f"v_rcp_f32 v{E+j}, v{E+j}", 8) for j in js]
            o += [(f"v_mul_f32 v{E+j}, v{E+j}, v{d+8+j}", 4) for j in js]
            o += [(f"v_cvt_pk_bf16_f32 v{P+2*half+q}, v{E+4*half+2*q}, v{E+4*half+2*q+1}", 4) for q in range(2)]
        o += [((("st", t), f"buffer_store_dwordx4 v[{P}:{P+3}], v9, s[16:19], s{33 if t<4 else 34} offen offset:{1024*(t%4)}"), 8)]
        return o
    q = []
    def fill(budget):
        while q and budget >= q[0][1]:
            op, c = q.pop(0); budget -= c
            if isinstance(op, tuple): lst(a, op[1]); vm.q.append(op[0])
            else: a(op)
    for t in range(NA): rd(t, 0, WF + 4*t)
    wait_flags(a, [(FL(F_O), 14, 16)])
    a.rt(9)
    for ks in range(8): xld(ks)
    other = [(lambda i=i: vm.issue("stat", f"buffer_load_dwordx2 v[{TMP+8+2*i}:{TMP+9+2*i}], v5, s[16:19], s30 offen offset:{256*i} sc1")) for i in range(7)]
    other += [(lambda i=i: dma(NA, i)) for i in range(7)]
    other += [(lambda t=t: vm.issue("cs", f"buffer_load_dwordx4 v[{CS+4*t}:{CS+4*t+3}], v9, s[16:19], s{31 if t<4 else 32} offen offset:{1024*(t%4)} sc1")) for t in range(7)]
    for ks in range(28):
        cur, nxt = WF + 16*(ks % 2), WF + 16*((ks+1) % 2)
        vm.wait(("x", ks))
        if ks == 27: vm.wait(("w", NA, 6)); lg.drain(); a("s_barrier")
        if ks == 18: vm.wait("stat"); q += stats_ops()
        for t in range(NA):
            lg.wait(("r", t, ks))
            mfma(t, cur + 4*t, ks)
            if ks < 27: rd(t, ks+1, nxt + 4*t)
            elif t < 3: rd(NA, t, WF + 4*t)
            if t == 0 and ks + 8 < 28: xld(ks + 8)
            if t == 2 and other: other.pop(0)()
            fill(16)
    assert not q and not other
    vm.wait("cs")
    a("s_nop 0")
    for t in range(NA): csmfma(t)
    a.rt(10)
    pend = list(range(NA))
    seq = [(t, ks) for t in range(NA, 7) for ks in range(28)]
    gap = 0; ready = {t: 2 for t in range(NA)}; sigA = False
    for n, (t, ks) in enumerate(seq):
        if n + 3 < len(seq):
            t2, k2 = seq[n+3]
            if k2 == 0: vm.wait(("w", t2, 6)); a("s_barrier")
        lg.wait(("r", t, ks))
        mfma(t, WF + 4*(n % 4), ks)
        if n + 3 < len(seq): rd(t2, k2, WF + 4*((n+3) % 4))
        busy = t == NA and ks < 14
        if busy: dma(5 + ks // 7, ks % 7)
        while pend and ready[pend[0]] <= gap: q += epi_ops(pend.pop(0))
        if t == 6 and ks == 14:
            assert not any(isinstance(op, tuple) and op[0][1] < 4 for op, c in q)
            vm.wait(("st", 3)); signal(a, FL(F_GUA), tmp=14, vm=""); vm.q.append("sig")
        else: fill(12 if busy else 20)
        gap += 1
        if ks == 27:
            csmfma(t); pend.append(t); ready[t] = gap + 4
            fill(16)
    a("s_nop 7\ns_nop 3")
    while pend: q += epi_ops(pend.pop(0))
    fill(10**9)
    signal(a, FL(F_GUB))
    a.rt(11)
    a("s_barrier")

def down(a):
    vm = Ctr(a, "vmcnt", 63)
    roles_tt(a); qkv_wsetup(a)
    a("s_cmp_lg_u32 s15, 0\ns_cselect_b32 s22, 0, s22")
    roles_o(a)
    a(f"""s_cmp_ge_u32 s11, 28
    s_cbranch_scc1 D_skip
    s_bfe_u32 s36, s24, 0x10002
    s_lshl_b32 s36, s36, 2
    s_add_u32 s36, s36, s3
    s_lshl_b32 s36, s36, 2
    v_and_b32 v11, 3, v2
    v_add_u32 v11, s36, v11
    v_bfe_u32 v10, v2, 2, 1
    s_and_b32 s36, s24, 2
    v_add_u32 v10, s36, v10""")
    slot_addr(a, 14, 11, 10)
    for d, src, base in ((28, 25, 'WD'), (29, 27, 'WD'), (30, 24, 'H0'), (31, 26, 'H0')):
        a(f"""s_mul_i32 s{d}, s{src}, 112
        s_mul_i32 s36, s3, 28
        s_add_u32 s{d}, s{d}, s36
        s_lshl_b32 s{d}, s{d}, 10
        s_add_u32 s{d}, s{d}, {WS[base][0]}""")
    a("s_add_u32 s30, s30, s15\ns_add_u32 s31, s31, s15")
    red_addr(a)
    wait_flags(a, [(FL(F_GUA), 14, 16)])
    a.rt(12)
    WR, HB, NS = 16, 104, 18
    cur = {28: 0, 30: 0}
    def ld(kind, n):
        sb = 28 if kind == 'w' else 30
        base = KORD[n] - (n % 4 if n < 16 else (n-16) % 3)
        for p in range(2):
            if base != cur[sb]: a(f"s_add_u32 s{sb+p}, s{sb+p}, {(1024*(base-cur[sb])) & 0xffffffff}")
            r = (WR + 8*(n-NWD) if kind == 'w' else HB + 8*(n % NS)) + 4*p
            vm.issue((kind, n, p), f"buffer_load_dwordx4 v[{r}:{r+3}], v9, s[16:19], s{sb+p} offen offset:{1024*(KORD[n]-base)} sc1")
        cur[sb] = base
    LA = 8
    for n in range(LA): ld('h', n)
    nw = NWD; nd = 0
    for n in range(28):
        if n == 5: a(f"s_add_u32 s35, s15, {FL(F_GUB)}"); vm.issue("fb", "buffer_load_dwordx2 v[248:249], v14, s[16:19], s35 offen sc1")
        if n == 8:
            vm.wait("fb")
            a(f"v_cmp_ne_u32 vcc, s{NONCE}, v248\ns_nop 4\ns_cbranch_vccnz D_pw\nD_pb:")
        for ib in range(2):
            vm.wait(('h', n, ib), ('w', n, 1))
            for ia in range(2):
                t = 16*(2*ib + ia); r = HB + 8*(n % NS) + 4*ib
                w = R((256 + WDA + 8*n if n < NWD else WR + 8*(n-NWD)) + 4*ia, 4)
                a(f"v_mfma_f32_32x32x16_bf16 a[{t}:{t+15}], {w}, v[{r}:{r+3}], {'0' if n==0 else 'a[%d:%d]'%(t,t+15)}")
            if ib == 0 and n + LA < 28: ld('h', n + LA)
            if ib == 1 and nw < 28 and n >= 4: ld('w', nw); nw += 1
            if n >= 18 and nd < 28:
                for _ in range(1 if ib == 0 else 2):
                    if nd < 28: vm.q.append("dma"); qkv_wdma(a); nd += 1
    assert nd == 28
    a.rt(13)
    a("s_nop 3")
    T = HB
    reduce4(a, 256, T)
    a("s_cmp_lg_u32 s15, 0\ns_cbranch_scc1 D_out")
    xstore(a, T, 'XD0')
    keep_res(a, T)
    signal(a, FL(F_D))
    a("s_barrier\ns_branch D_end\nD_skip:\ns_cmp_lg_u32 s15, 0\ns_cbranch_scc1 L_fin")
    for i in range(28): qkv_wdma(a)
    a("D_end:")
    a.rt(14)
def down_cold(a):
    a(f"""D_pw:
    s_mov_b32 s34, {SPIN}
    D_pw1:
    buffer_load_dwordx2 v[248:249], v14, s[16:19], s35 offen sc1
    s_waitcnt vmcnt(0)
    v_cmp_ne_u32 vcc, s{NONCE}, v248
    s_nop 4
    s_cbranch_vccz D_pb
    s_sub_u32 s34, s34, 1
    s_cmp_lg_u32 s34, 0
    s_cbranch_scc1 D_pw1
    s_branch D_pb
    D_out:""")
    a.srd(20, POUT, S_*D_*2)
    rm_addr(a)
    a("s_waitcnt vmcnt(0)")
    for g in range(4): a(f"buffer_store_dwordx2 v[{104+16+2*g}:{104+17+2*g}], v5, s[20:23], s37 offen offset:{16*g}")
    a("s_branch L_fin")

def build(path):
    a = A()
    a.raw(kernel_head(KN))
    prologue(a)
    a.rt(0)
    qkv(a, 0)
    a("L_layer:")
    att(a); oproj(a); gu(a); down(a)
    a.rt_out(0)
    a.rt(0)
    qkv(a, 1)
    a("s_branch L_layer")
    att_cold(a); down_cold(a)
    for x in cold: a(x)
    a("L_fin:")
    a.rt(14)
    a.rt_out(0)
    a("L_exit:\ns_endpgm")
    HDR = open('interleave_layers__grouped_kv_mqa__glu_gated_glu__prompt.s.ref').read().split("; Override")[0]
    t = HDR + f"; @launch grid=(256,1,1) block=(256,1,1) lds={LDS_TOTAL}\n" + '.amdgcn_target "amdgcn-amd-amdhsa--gfx950"\n.text\n'
    t += a.text() + '.section .rodata,"a"\n' + kernel_desc(KN, 256, 256)
    open(path, "w").write(t)
if __name__ == "__main__":
    A.stamps = int(sys.argv[2]) if len(sys.argv) > 2 else 0
    build(sys.argv[1])
```

```python
import sys, math, struct
from asmlib import *
def f2u(x): return struct.unpack("<I", struct.pack("<f", x))[0]
KN = "interleave_layers__grouped_kv_mqa__glu_gated_glu__prompt_kernel"
PX, PWQ, PWK, PWV, PWO, PWG, PWU, PWD, POUT = 40, 42, 44, 46, 48, 52, 54, 56, 58
NONCE = 14
LDS_TOTAL = 163840
RED = LDS_TOTAL - 49152
QSCALE = f2u(math.log2(math.e) / math.sqrt(DH))
TB = 60.0
SPIN = 200000
import os
FAST = int(os.environ.get('FAST', 1))
ALIAS = int(os.environ.get('ALIAS', 1))
DL = '0' if ALIAS else 's15'
F_Q, F_ATT, F_O, F_GUA, F_GUB, F_D, F_KV = 0, 1, 2, 3, 4, 5, 6
MODE = 61
SLOT = 9
cold = []
def FL(ph): return WS['FLG0'][0] + ph*8192
F_PREP = WS['PFL'][0]
_uid = [0]
def uid(p): _uid[0] += 1; return f"{p}{_uid[0]}"

def lst(a, lines):
    if isinstance(lines, str): lines = [lines]
    l = uid("S")
    a(f"s_cmp_eq_u32 s{MODE}, 0\ns_cbranch_scc1 {l}")
    for x in lines: a(x)
    a(f"{l}b:")
    cold.append(f"{l}:\n" + "".join(x + " sc1\n" for x in lines) + f"s_branch {l}b")
def signal(a, base, val=None, tmp=10, vm="s_waitcnt vmcnt(0)", local=True):
    a(f"""s_add_u32 s38, s{SLOT}, {base}
    s_add_u32 s38, s38, s15
    v_mov_b32 v{tmp}, s{NONCE}
    v_mov_b32 v{tmp+1}, {val if val else 0}
    v_mov_b32 v1, 0
    {vm}
    s_mov_b64 exec, 1""")
    st = f"buffer_store_dwordx2 v[{tmp}:{tmp+1}], v1, s[16:19], s38 offen"
    if local: lst(a, st)
    else: a(st + " sc1")
    a("s_mov_b64 exec, -1")
def wait_flags(a, items):
    l, d = uid("W"), uid("Wd")
    a(f"s_mov_b32 s39, {SPIN}\n{l}:")
    for base, va, vd in items:
        a(f"s_add_u32 s38, s15, {base}\nbuffer_load_dwordx2 v[{vd}:{vd+1}], v{va}, s[16:19], s38 offen sc1")
    a("s_waitcnt vmcnt(0)")
    for i, (base, va, vd) in enumerate(items):
        if i == 0: a(f"v_cmp_ne_u32 vcc, s{NONCE}, v{vd}")
        else: a(f"v_cmp_ne_u32 s[36:37], s{NONCE}, v{vd}\ns_nop 1\ns_or_b64 vcc, vcc, s[36:37]")
    a(f"""s_nop 1
    s_cmp_eq_u64 vcc, 0
    s_cbranch_scc1 {d}
    s_sub_u32 s39, s39, 1
    s_cmp_lg_u32 s39, 0
    s_cbranch_scc1 {l}
    {d}:""")
def slot_addr(a, dst, jexpr_v, wave_v):
    a(f"""s_and_b32 s38, s2, 7
    s_lshl_b32 s38, s38, 10
    v_lshl_add_u32 v{dst}, v{jexpr_v}, 2, v{wave_v}
    v_lshl_add_u32 v{dst}, v{dst}, 3, s38""")

def prologue(a):
    a(f"""s_cmp_ge_u32 s2, 256
    s_cbranch_scc1 L_exit
    s_load_dwordx16 s[40:55], s[0:1], 0
    s_load_dwordx4 s[56:59], s[0:1], 64
    s_load_dwordx4 s[4:7], s[0:1], 80
    s_memrealtime s[8:9]
    v_lshrrev_b32 v1, 6, v0
    v_and_b32 v2, 63, v0
    v_and_b32 v3, 31, v0
    v_readfirstlane_b32 s3, v1
    v_lshrrev_b32 v4, 5, v2
    v_lshlrev_b32 v9, 4, v2
    v_cmp_eq_u32 s[62:63], 1, v4
    s_waitcnt lgkmcnt(0)
    s_mov_b32 s15, 0
    s_mov_b32 s{MODE}, 0
    s_getreg_b32 s10, hwreg(HW_REG_XCC_ID, 0, 4)
    s_mov_b32 s12, s6
    s_mov_b32 s13, s7
    s_mov_b32 s6, 256
    s_mov_b32 s7, 0x20000""")
    a.srd(16, 12, WS_END)
    a(f"""s_and_b32 s{SLOT}, s2, 7
    s_lshl_b32 s{SLOT}, s{SLOT}, 5
    s_lshr_b32 s11, s2, 3
    s_add_u32 s{SLOT}, s{SLOT}, s11
    s_lshl_b32 s{SLOT}, s{SLOT}, 2
    s_add_u32 s{SLOT}, s{SLOT}, s3
    s_lshl_b32 s{SLOT}, s{SLOT}, 3
    s_or_b32 s11, s2, s3
    s_cmp_lg_u32 s11, 0
    s_cbranch_scc1 L_notag
    s_lshl_b32 s8, s8, 5
    s_or_b32 s8, s8, 16
    v_mov_b32 v10, s8
    v_mov_b32 v1, 0
    buffer_store_dword v10, v1, s[4:7], 0 offen sc1
    L_notag:""")
def get_nonce(a):
    u = uid("T")
    a(f"""v_mov_b32 v1, 0
    s_mov_b32 s39, {SPIN}
    L_tag{u}:
    buffer_load_dword v10, v1, s[4:7], 0 offen sc1
    s_waitcnt vmcnt(0)
    v_readfirstlane_b32 s{NONCE}, v10
    s_sub_u32 s39, s39, 1
    s_cmp_eq_u32 s39, 0
    s_cbranch_scc1 L_tagd{u}
    s_cmp_eq_u32 s{NONCE}, 0
    s_cbranch_scc1 L_tag{u}
    L_tagd{u}:""")
def roles_tt(a):
    a("""s_and_b32 s24, s2, 7
    s_lshr_b32 s25, s2, 5
    s_lshl_b32 s24, s24, 3
    s_add_u32 s24, s24, s25
    s_bfe_u32 s26, s2, 0x20003""")

RES = 248
def roles_o(a):
    a("""s_lshr_b32 s11, s2, 3
    s_mul_i32 s26, s11, 9363
    s_lshr_b32 s26, s26, 16
    s_mul_i32 s27, s26, 7
    s_sub_u32 s25, s11, s27
    s_min_u32 s26, s26, 3
    s_and_b32 s24, s2, 7
    s_lshl_b32 s24, s24, 2
    s_add_u32 s24, s24, s26
    s_lshr_b32 s26, s3, 1
    s_and_b32 s27, s3, 1
    s_lshl_b32 s24, s24, 1
    s_lshl_b32 s25, s25, 1
    s_add_u32 s24, s24, s26
    s_add_u32 s25, s25, s27
    s_xor_b32 s26, s24, 1
    s_xor_b32 s27, s25, 1""")
def rm_addr(a):
    a(f"""v_mul_u32_u24 v5, {D_*2}, v3
    v_lshl_add_u32 v5, v4, 3, v5
    s_mul_i32 s37, s24, {32*D_*2}
    s_lshl_b32 s38, s25, 6
    s_add_u32 s37, s37, s38""")
def prep_setup(a):
    a(f"""v_lshrrev_b32 v13, 3, v2
    v_and_b32 v14, 7, v2
    v_lshlrev_b32 v14, 4, v14
    s_mov_b32 s31, 0x20000
    s_cmp_ge_u32 s2, 112
    s_cbranch_scc1 L_ps_b
    s_cmp_ge_u32 s3, 2
    s_cselect_b32 s28, s{PWU}, s{PWG}
    s_cselect_b32 s29, s{PWU+1}, s{PWG+1}
    s_mov_b32 s30, {D_*F_*2}
    s_and_b32 s34, s2, 3
    s_mul_i32 s34, s34, 112
    s_and_b32 s35, s3, 1
    s_mul_i32 s35, s35, 56
    s_add_u32 s34, s34, s35
    s_mul_i32 s34, s34, {F_*2}
    s_lshr_b32 s35, s2, 2
    s_lshl_b32 s35, s35, 7
    s_add_u32 s34, s34, s35
    s_mov_b32 s35, {F_*2}
    s_branch L_ps_e
    L_ps_b:
    s_sub_u32 s34, s2, 112
    s_cmp_ge_u32 s34, 98
    s_cselect_b32 s28, s{PWO}, s{PWD}
    s_cselect_b32 s29, s{PWO+1}, s{PWD+1}
    s_mov_b32 s30, {F_*D_*2}
    s_cselect_b32 s30, {D_*D_*2}, s30
    s_cselect_b32 s36, 28, 32
    s_cselect_b32 s37, 98, 0
    s_cmp_ge_u32 s2, 238
    s_cselect_b32 s30, 0, s30
    s_sub_u32 s34, s34, s37
    s_mul_i32 s35, s34, 9363
    s_lshr_b32 s35, s35, 16
    s_mul_i32 s37, s35, 7
    s_sub_u32 s34, s34, s37
    s_lshl_b32 s35, s35, 2
    s_add_u32 s35, s35, s3
    s_mul_i32 s35, s35, s36
    s_mul_i32 s35, s35, {D_*2}
    s_lshl_b32 s34, s34, 7
    s_add_u32 s34, s34, s35
    s_mov_b32 s35, {D_*2}
    L_ps_e:
    v_mul_lo_u32 v7, v13, s35
    s_lshl_b32 s35, s35, 3
    v_add_u32 v7, v7, v14""")
def prep_load(a, i):
    a(f"buffer_load_dwordx4 a[{4*i}:{4*i+3}], v7, s[28:31], s34 offen\ns_add_u32 s34, s34, s35")
def prep_finish(a):
    a(f"""s_mul_i32 s28, s3, 28672
    v_add_u32 v10, s28, v9
    v_bfe_u32 v5, v2, 4, 1
    v_bfe_u32 v7, v2, 2, 2
    v_and_b32 v8, 3, v2
    v_lshl_add_u32 v6, v4, 2, v7
    v_lshlrev_b32 v6, 7, v6
    v_lshl_add_u32 v6, v8, 3, v6""")
    for i in range(7): a(f"ds_write_b128 v10, a[{4*i}:{4*i+3}] offset:{1024*i}")
    a(f"""s_waitcnt lgkmcnt(0)
    s_barrier
    s_cmp_ge_u32 s2, 238
    s_cbranch_scc1 L_pf_e
    s_cmp_ge_u32 s2, 112
    s_cbranch_scc1 L_pf_b
    v_mul_u32_u24 v11, 57344, v5
    v_add_u32 v11, v11, v6
    s_lshl_b32 s28, s3, 5
    v_add_u32 v11, s28, v11
    s_and_b32 s25, s2, 3
    s_and_b32 s26, s2, 0xfc
    s_add_u32 s26, s26, s3
    s_mul_i32 s27, s26, 28
    s_mul_i32 s28, s25, 7
    s_add_u32 s27, s27, s28
    s_lshl_b32 s27, s27, 10
    s_add_u32 s27, s27, {WS['WGU'][0]}
    v_mov_b32 v12, 0""")
    off = lambda R: (R // 56)*28672 + (R % 56)*128
    for ks in range(7):
        a(f"ds_read_b64_tr_b16 v[{16+4*ks}:{17+4*ks}], v11 offset:{off(16*ks)}")
        a(f"ds_read_b64_tr_b16 v[{18+4*ks}:{19+4*ks}], v11 offset:{off(16*ks+8)}")
    for ks in range(7):
        a.wait(lgkm=2*(6-ks))
        a(f"buffer_store_dwordx4 v[{16+4*ks}:{19+4*ks}], v9, s[16:19], s27 offen sc1\ns_add_u32 s27, s27, 1024")
        for r in range(4):
            a(f"""v_lshlrev_b32 v13, 16, v{16+4*ks+r}
            v_and_b32 v14, 0xffff0000, v{16+4*ks+r}
            v_add_f32 v12, v12, v13
            v_add_f32 v12, v12, v14""")
    a(f"""v_mov_b32 v13, v12
    s_nop 1
    v_permlane32_swap_b32 v12, v13
    s_nop 1
    v_add_f32 v12, v12, v13
    v_cvt_pk_bf16_f32 v13, v12, 0
    v_lshlrev_b32 v14, 16, v13
    v_sub_f32 v14, v12, v14
    v_cvt_pk_bf16_f32 v12, v12, v14
    v_lshlrev_b32 v15, 4, v3
    s_lshl_b32 s26, s26, 10
    s_lshr_b32 s27, s25, 1
    s_lshl_b32 s27, s27, 9
    s_and_b32 s28, s25, 1
    s_lshl_b32 s28, s28, 3
    s_add_u32 s26, s26, s27
    s_add_u32 s26, s26, s28
    s_add_u32 s26, s26, {WS['CSF'][0]}
    buffer_store_dwordx2 v[12:13], v15, s[16:19], s26 offen sc1
    s_branch L_pf_e
    L_pf_b:
    s_sub_u32 s24, s2, 112
    s_cmp_ge_u32 s24, 98
    s_cselect_b32 s31, 32, 112
    s_mov_b32 s32, {WS['WD'][0]}
    s_cselect_b32 s32, {WS['WO'][0]}, s32
    s_cselect_b32 s33, 98, 0
    s_sub_u32 s24, s24, s33
    s_mul_i32 s25, s24, 9363
    s_lshr_b32 s25, s25, 16
    s_mul_i32 s26, s25, 7
    s_sub_u32 s24, s24, s26
    s_lshl_b32 s26, s25, 2
    s_add_u32 s26, s26, s3
    v_lshl_add_u32 v11, v5, 5, v6
    v_add_u32 v11, s28, v11
    s_lshl_b32 s24, s24, 1
    s_mul_i32 s27, s24, s31
    s_lshl_b32 s26, s26, 1
    s_add_u32 s27, s27, s26
    s_lshl_b32 s27, s27, 10
    s_add_u32 s27, s27, s32
    s_lshl_b32 s31, s31, 10
    s_add_u32 s28, s27, s31""")
    for t in range(2):
        for b in range(2):
            r = 16 + 8*t + 4*b
            a(f"ds_read_b64_tr_b16 v[{r}:{r+1}], v11 offset:{b*2048+t*64}")
            a(f"ds_read_b64_tr_b16 v[{r+2}:{r+3}], v11 offset:{b*2048+t*64+1024}")
    a.wait(lgkm=0)
    for t in range(2):
        for b in range(2):
            r = 16 + 8*t + 4*b
            a(f"buffer_store_dwordx4 v[{r}:{r+3}], v9, s[16:19], s{27+t} offen offset:{b*1024} sc1")
    a(f"""L_pf_e:
    s_lshr_b32 s38, s{SLOT}, 3
    s_add_u32 s38, s38, {F_PREP}
    s_or_b32 s39, s{NONCE}, s10
    v_mov_b32 v10, s39
    v_mov_b32 v1, 0
    s_waitcnt vmcnt(0)
    s_barrier
    s_cmp_lg_u32 s3, 0
    s_cbranch_scc1 L_pf_x
    s_mov_b64 exec, 1
    buffer_store_dword v10, v1, s[16:19], s38 offen sc1
    s_mov_b64 exec, -1
    L_pf_x:""")

LX, LS = 4*28672, 5*28672
def qkv_wsetup(a):
    a(f"""s_lshl_b32 s26, s26, 2
    s_add_u32 s26, s26, s3
    s_cmp_eq_u32 s26, 14
    s_cselect_b32 s20, s{PWK}, s{PWQ}
    s_cselect_b32 s21, s{PWK+1}, s{PWQ+1}
    s_cmp_eq_u32 s26, 15
    s_cselect_b32 s20, s{PWV}, s20
    s_cselect_b32 s21, s{PWV+1}, s21
    s_cmp_ge_u32 s26, 14
    s_mov_b32 s22, {D_*D_*2}
    s_cselect_b32 s22, {D_*DH*2}, s22
    s_cselect_b32 s33, {DH*2}, {D_*2}
    s_cselect_b32 s32, 0, s26
    s_mov_b32 s23, 0x20000
    s_lshl_b32 s32, s32, 6
    v_lshrrev_b32 v6, 2, v2
    v_and_b32 v8, 3, v2
    v_mul_lo_u32 v6, v6, s33
    v_lshl_add_u32 v6, v8, 4, v6
    s_lshl_b32 s33, s33, 4
    s_mul_i32 s25, s3, 28672
    s_mov_b32 m0, s25""")
def qkv_wdma(a):
    a("buffer_load_dwordx4 v6, s[20:23], s32 offen lds\ns_add_u32 m0, m0, 1024\ns_add_u32 s32, s32, s33")
def qkv(a, L):
    P = f"q{L}"
    rowmajor = (L == 0)
    roles_tt(a)
    if rowmajor:
        a.srd(20, PX, S_*D_*2)
        a(f"""v_mul_u32_u24 v5, {D_*2}, v3
        v_lshl_add_u32 v5, v4, 4, v5
        s_mul_i32 s27, s24, {32*D_*2}
        s_mul_i32 s32, s3, {7*32}
        s_add_u32 s27, s27, s32""")
        for i in range(7): a(f"buffer_load_dwordx4 v[{32+4*i}:{35+4*i}], v5, s[20:23], s27 offen offset:{32*i}")
        qkv_wsetup(a)
        for i in range(12): qkv_wdma(a)
        prep_setup(a)
        side = [lambda: qkv_wdma(a)]*16 + [(lambda i=i: prep_load(a, i)) for i in range(7)]
        nafter = 12
    else:
        qkv_wsetup(a)
        a(f"""s_lshr_b32 s36, s2, 6
        s_mul_i32 s36, s36, 7
        v_min_u32 v10, 13, v2
        v_lshrrev_b32 v11, 1, v10
        v_add_u32 v11, s36, v11
        v_and_b32 v10, 1, v10
        s_and_b32 s36, s24, 1
        s_lshl_b32 s36, s36, 1
        v_add_u32 v10, s36, v10""")
        slot_addr(a, 12, 11, 10)
        wait_flags(a, [(FL(F_D), 12, 14)])
        a(f's_mov_b32 s15, {LSTRIDE}')
        a.rt(1)
        a(f"""s_mul_i32 s27, s24, 28
        s_mul_i32 s36, s3, 7
        s_add_u32 s27, s27, s36
        s_lshl_b32 s27, s27, 10
        s_add_u32 s27, s27, {WS['X2'][0]}
        s_add_u32 s36, s27, 4096""")
        for i in range(7): a(f"buffer_load_dwordx4 v[{32+4*i}:{35+4*i}], v9, s[16:19], s{27 if i<4 else 36} offen offset:{1024*(i%4)} sc1")
        side = []; nafter = 0
    a(f"""v_bfe_u32 v10, v2, 2, 2
    v_lshl_add_u32 v10, v4, {3 if rowmajor else 2}, v10
    v_lshlrev_b32 v10, 6, v10
    v_bfe_u32 v11, v2, 4, 1
    v_lshl_add_u32 v10, v11, 5, v10
    v_lshl_add_u32 v10, v8, 3, v10
    v_add_u32 v10, s25, v10
    v_mov_b32 v12, 0
    v_mov_b32 v13, 0
    v_mov_b32 v14, 0
    v_mov_b32 v15, 0
    s_waitcnt vmcnt({nafter})""")
    ops = []
    for r in range(28):
        ops += split_lines(f"""v_lshlrev_b32 v{64+2*r}, 16, v{32+r}
        v_and_b32 v{65+2*r}, 0xffff0000, v{32+r}
        v_add_f32 v12, v12, v{64+2*r}
        v_fmac_f32 v13, v{64+2*r}, v{64+2*r}
        v_add_f32 v14, v14, v{65+2*r}
        v_fmac_f32 v15, v{65+2*r}, v{65+2*r}""")
    interleave(a, ops, side[:14], 12)
    a(f"""v_add_f32 v12, v12, v14
    v_add_f32 v13, v13, v15
    s_lshl_b32 s36, s3, 9
    v_lshlrev_b32 v14, 3, v2
    s_add_u32 s36, s36, {LS - 1024}
    v_add_u32 v15, s36, v14
    ds_write_b64 v15, v[12:13]
    v_lshlrev_b32 v14, 3, v3
    v_add_u32 v14, {LS - 1024}, v14
    v_add_u32 v8, {LX}, v9
    s_waitcnt lgkmcnt(0)
    s_barrier""")
    for i in range(8): a(f"ds_read_b64 v[{16+2*i}:{17+2*i}], v14 offset:{256*i}")
    for t in side[14:16]: t()
    a("s_waitcnt lgkmcnt(0)\ns_barrier")
    for i in range(1, 8): a(f"v_add_f32 v16, v16, v{16+2*i}\nv_add_f32 v17, v17, v{17+2*i}")
    a(f"""v_mul_f32 v16, {hex(f2u(1.0/D_))}, v16
    v_mul_f32 v17, {hex(f2u(1.0/D_))}, v17
    v_fma_f32 v17, -v16, v16, v17
    v_max_f32 v17, 0, v17
    v_add_f32 v17, {hex(f2u(1e-5))}, v17
    v_rsq_f32 v17, v17
    s_mul_i32 s36, s3, 7168
    v_add_u32 v15, s36, v8
    v_mul_f32 v16, v16, v17""")
    for i in range(7):
        for r in range(4):
            q = 64 + 8*i + 2*r
            a(f"""v_fma_f32 v{q}, v{q}, v17, -v16
            v_fma_f32 v{q+1}, v{q+1}, v17, -v16
            v_cvt_pk_bf16_f32 v{32+4*i+r}, v{q}, v{q+1}""")
        a(f"ds_write_b128 v15, v[{32+4*i}:{35+4*i}] offset:{1024*i}")
        if 16 + i < len(side): side[16+i]()
    a(f"s_waitcnt vmcnt({7 if rowmajor else 0}) lgkmcnt(0)\ns_barrier")
    second = 256 if rowmajor else 512
    def rd(ks):
        j = 32 + 8*(ks % 4)
        a(f"""ds_read_b64_tr_b16 v[{j}:{j+1}], v10 offset:{ks*1024}
        ds_read_b64_tr_b16 v[{j+2}:{j+3}], v10 offset:{ks*1024+second}
        ds_read_b128 v[{j+4}:{j+7}], v8 offset:{ks*1024}""")
    def loop(swap):
        for ks in range(3): rd(ks)
        for ks in range(28):
            if ks + 3 < 28: rd(ks + 3)
            a.wait(lgkm=3*min(3, 27-ks))
            j = 32 + 8*(ks % 4)
            x, y = (f"v[{j+4}:{j+7}]", f"v[{j}:{j+3}]") if swap else (f"v[{j}:{j+3}]", f"v[{j+4}:{j+7}]")
            a(f"v_mfma_f32_32x32x16_bf16 v[64:79], {x}, {y}, {'0' if ks==0 else 'v[64:79]'}")
    def tilenorm():
        a("v_dot2_f32_bf16 v12, v32, v32, 0")
        for r in range(1, 8): a(f"v_dot2_f32_bf16 v12, v{32+r}, v{32+r}, v12")
        a("s_nop 2\nv_mov_b32 v13, v12\ns_nop 1\nv_permlane32_swap_b32 v12, v13\ns_nop 1\nv_add_f32 v12, v12, v13")
        for sh in (1, 2, 4, 8): a(f"s_nop 1\nv_max_f32_dpp v12, v12, v12 row_shr:{sh} row_mask:0xf bank_mask:0xf")
        a("s_nop 1\nv_readlane_b32 s36, v12, 15\nv_readlane_b32 s37, v12, 31\ns_nop 3\ns_max_u32 s36, s36, s37")
    a(f"s_cmp_eq_u32 s26, 15\ns_cbranch_scc1 {P}_v")
    loop(False)
    a(f"s_cmp_eq_u32 s26, 14\ns_cbranch_scc1 {P}_k")
    a(f"""s_lshl_b32 s27, s24, 15
    s_add_u32 s27, s27, {WS['Q%d'%(0 if ALIAS else L)][0]}
    s_lshl_b32 s32, s26, 3
    v_add_u32 v5, s32, v4
    s_mov_b32 s33, 9363
    s_mov_b32 s32, {hex(QSCALE)}""")
    for g in range(4):
        a(f"""v_add_u32 v6, {2*g}, v5
        v_mul_u32_u24 v7, s33, v6
        v_lshrrev_b32 v7, 16, v7
        v_mul_u32_u24 v11, 7, v7
        v_sub_u32 v6, v6, v11
        v_lshlrev_b32 v7, 11, v7
        v_lshrrev_b32 v11, 2, v6
        v_lshl_add_u32 v7, v11, 10, v7
        v_and_b32 v11, 1, v6
        v_lshl_add_u32 v7, v11, 9, v7
        v_bfe_u32 v11, v6, 1, 1
        v_lshl_add_u32 v7, v11, 3, v7
        v_lshl_add_u32 v{16+g}, v3, 4, v7""")
    for g in range(4):
        for i in range(4): a(f"v_mul_f32 v{64+4*g+i}, s32, v{64+4*g+i}")
        a(f"""v_cvt_pk_bf16_f32 v{32+2*g}, v{64+4*g}, v{65+4*g}
        v_cvt_pk_bf16_f32 v{33+2*g}, v{66+4*g}, v{67+4*g}
        """)
    lst(a, [f"buffer_store_dwordx2 v[{32+2*g}:{33+2*g}], v{16+g}, s[16:19], s27 offen" for g in range(4)])
    tilenorm()
    if L == 0: get_nonce(a)
    signal(a, FL(F_Q), "s36")
    a(f"s_branch {P}_fin\n{P}_k:")
    a(f"""s_lshl_b32 s27, s24, 12
    s_add_u32 s27, s27, {WS['KV%d'%L][0]}
    v_mov_b32 v13, 0x3f803f80
    v_mov_b32 v14, 0x3f80
    s_nop 7""")
    for r in range(8): a(f"v_cvt_pk_bf16_f32 v{32+r}, v{64+2*r}, v{65+2*r}")
    a(f"""v_cndmask_b32 v42, v38, v13, s[62:63]
    v_cndmask_b32 v43, v39, v14, s[62:63]
    v_mov_b32 v40, v36
    v_mov_b32 v41, v37
    buffer_store_dwordx4 v[32:35], v9, s[16:19], s27 offen sc1
    buffer_store_dwordx4 v[40:43], v9, s[16:19], s27 offen offset:1024 sc1
    v_cndmask_b32 v38, v38, 0, s[62:63]
    v_cndmask_b32 v39, v39, 0, s[62:63]""")
    tilenorm()
    a(f"s_branch {P}_end\n{P}_v:")
    loop(True)
    a(f"""s_lshl_b32 s27, s24, 12
    s_add_u32 s27, s27, {WS['KV%d'%L][0]}
    v_cmp_eq_u32 vcc, 28, v3
    v_mov_b32 v13, 0x3f803f80
    s_mov_b32 s36, 0
    v_cndmask_b32 v13, 0, v13, vcc
    v_cmp_lt_u32 vcc, 27, v3
    s_nop 7""")
    for r in range(8): a(f"v_cvt_pk_bf16_f32 v{32+r}, v{64+2*r}, v{65+2*r}")
    for r in range(8): a(f"v_cndmask_b32 v{32+r}, v{32+r}, v13, vcc")
    a(f"""buffer_store_dwordx4 v[32:35], v9, s[16:19], s27 offen offset:2048 sc1
    buffer_store_dwordx4 v[36:39], v9, s[16:19], s27 offen offset:3072 sc1
    {P}_end:""")
    if L == 0: get_nonce(a)
    signal(a, FL(F_KV), "s36", local=False)
    a(f"{P}_fin:")
    a.rt(2)
    if L == 0:
        roles_o(a)
        a.srd(20, PX, S_*D_*2)
        rm_addr(a)
        for g in range(4): a(f"buffer_load_dwordx2 a[{RES+2*g}:{RES+1+2*g}], v5, s[20:23], s37 offen offset:{16*g}")
        prep_finish(a)
    else: a("s_barrier")

QB, KVB, SB, EB, PB, OB = 16, 48, 112, 144, 160, 168
WOA, WDA, NWD = 0, 112, 17
KORD = [7*c + t for c in range(4) for t in range(4)] + [7*c + t for c in range(4) for t in range(4, 7)]
def mf(d, x, y, c): return f"v_mfma_f32_32x32x16_bf16 v[{d}:{d+15}], v[{x}:{x+3}], v[{y}:{y+3}], " + (c if isinstance(c, str) else f"v[{c}:{c+15}]")
def wmax(a, r, dst):
    for sh in (1, 2, 4, 8): a(f"s_nop 1\nv_max_f32_dpp v{r}, v{r}, v{r} row_shr:{sh} row_mask:0xf bank_mask:0xf")
    a(f"""s_nop 1
    v_readlane_b32 s36, v{r}, 15
    v_readlane_b32 s37, v{r}, 31
    v_readlane_b32 s38, v{r}, 47
    v_readlane_b32 s39, v{r}, 63
    s_nop 3
    s_max_u32 s36, s36, s37
    s_max_u32 s38, s38, s39
    s_max_u32 s{dst}, s36, s38""")
def att(a):
    vm = Ctr(a, "vmcnt", 63)
    roles_o(a)
    a(f"""s_lshl_b32 s36, s3, 3
    s_lshl_b32 s96, s25, 5
    s_lshl_b32 s97, s27, 5
    s_add_u32 s96, s96, s36
    s_add_u32 s97, s97, s36
    s_lshl_b32 s96, s96, 10
    s_lshl_b32 s97, s97, 10
    s_add_u32 s96, s96, {WS['WO'][0]}
    s_add_u32 s97, s97, {WS['WO'][0]}
    s_mul_i32 s36, s3, 28
    s_mul_i32 s98, s25, 112
    s_mul_i32 s99, s27, 112
    s_add_u32 s98, s98, s36
    s_add_u32 s99, s99, s36
    s_lshl_b32 s98, s98, 10
    s_lshl_b32 s99, s99, 10
    s_add_u32 s98, s98, {WS['WD'][0]}
    s_add_u32 s99, s99, {WS['WD'][0]}
    s_and_b32 s100, s11, 15
    s_mul_i32 s100, s100, {7*28672}
    s_mul_i32 s101, s3, 7168
    s_add_u32 s100, s100, s101
    s_add_u32 s100, s100, {WS['WGU'][0]}
    s_mul_i32 s4, s24, 28
    s_lshl_b32 s36, s25, 1
    s_add_u32 s4, s4, s36
    s_lshl_b32 s4, s4, 10
    s_add_u32 s5, s4, {WS['XD0'][0]}
    s_add_u32 s4, s4, {DL}
    s_add_u32 s4, s4, {WS['XO0'][0]}
    s_mul_i32 s6, s24, 14
    s_add_u32 s6, s6, s25
    s_lshl_b32 s6, s6, 8
    s_add_u32 s6, s6, {DL}
    s_add_u32 s6, s6, {WS['ST0'][0]}
    s_and_b32 s7, s2, 7
    s_lshl_b32 s7, s7, 1
    s_lshr_b32 s36, s11, 4
    s_add_u32 s7, s7, s36
    s_lshl_b32 s7, s7, 2
    s_add_u32 s7, s7, s3
    s_mul_i32 s7, s7, 112
    s_and_b32 s36, s11, 15
    s_mul_i32 s36, s36, 7
    s_add_u32 s7, s7, s36
    s_lshl_b32 s7, s7, 10
    s_add_u32 s7, s7, {DL}
    s_add_u32 s7, s7, {WS['H0'][0]}
    v_lshrrev_b32 v240, 2, v2
    v_lshlrev_b32 v240, 7, v240
    v_lshrrev_b32 v241, 3, v2
    v_lshlrev_b32 v241, 13, v241
    v_add_u32 v241, s{SLOT}, v241""")
    roles_tt(a)
    a(f"""s_lshl_b32 s8, s24, 2
    s_add_u32 s8, s8, s26
    s_lshl_b32 s8, s8, 2
    s_add_u32 s8, s8, s3
    s_lshl_b32 s8, s8, 11
    s_add_u32 s8, s8, {DL}
    s_add_u32 s8, s8, {WS['O0'][0]}""")
    a(f"""s_lshl_b32 s27, s3, 16
    s_add_u32 s27, s27, s15
    s_add_u32 s27, s27, {WS['KV0'][0]}
    s_add_u32 s20, s12, s27
    s_addc_u32 s21, s13, 0
    s_mov_b32 s22, 65536
    s_mov_b32 s23, 0x20000
    v_lshlrev_b32 v12, 7, v2
    v_add_u32 v12, {112 + FL(F_KV) - FL(F_Q)}, v12
    v_and_b32 v10, 15, v2
    s_lshl_b32 s36, s3, 4
    v_add_u32 v10, s36, v10
    v_lshlrev_b32 v10, 7, v10
    v_add_u32 v10, {120 + FL(F_KV) - FL(F_Q)}, v10
    s_mul_i32 s36, s26, 7
    s_lshr_b32 s36, s36, 1
    v_and_b32 v11, 3, v2
    v_add_u32 v11, s36, v11
    s_lshl_b32 s36, s24, 7
    v_lshl_add_u32 v11, v11, 3, s36
    v_cmp_gt_u32 vcc, 16, v2
    v_lshlrev_b32 v8, 2, v2
    s_lshl_b32 s27, s24, 15
    v_cndmask_b32 v13, v11, v10, vcc
    s_add_u32 s27, s27, {DL}
    s_add_u32 s27, s27, {WS['Q0'][0]}""")
    for r in range(64): a(f"v_mov_b32 v{OB+r}, 0")
    for r in range(4): a(f"v_mov_b32 v{KVB+60+r}, 0\nv_mov_b32 v{EB+12+r}, 0")
    a(f"v_mov_b32 v{PB+4}, 0\nv_mov_b32 v{PB+5}, 0")
    wait_flags(a, [(FL(F_Q), 12, 14), (FL(F_Q), 13, 10)])
    a.rt(3)
    def kvload(kt, p):
        r = KVB + 16*(kt % 4) + 4*p
        vm.issue(("kv", kt, p), f"buffer_load_dwordx4 v[{r}:{r+3}], v9, s[20:23], s30 offen offset:{1024*p} sc1")
        if p == 3: a("s_add_u32 s30, s30, 4096")
    def qload(i):
        a(f"""s_add_u32 s28, s3, {i}
        s_and_b32 s28, s28, 3
        s_lshl_b32 s29, s26, 2
        s_add_u32 s28, s28, s29
        s_lshl_b32 s28, s28, 11
        s_add_u32 s28, s28, s27""")
        for p in range(2): vm.issue(("q", i), f"buffer_load_dwordx4 v[{QB+8*i+4*p}:{QB+8*i+4*p+3}], v9, s[16:19], s28 offen offset:{1024*p} sc1")
    a("s_mov_b32 s30, 0")
    qload(0); kvload(0, 0); kvload(0, 1); qload(1); kvload(0, 2); kvload(0, 3); qload(2); qload(3)
    for kt in (1, 2):
        for p in range(4): kvload(kt, p)
    wmax(a, 15, 34); wmax(a, 11, 35)
    a(f"""v_mov_b32 v10, s34
    v_mul_f32 v10, s35, v10
    v_cmp_nge_f32 vcc, {hex(f2u(TB*TB/2))}, v10""")
    vm.wait(("q", 3))
    for i in range(4):
        a(f"v_cndmask_b32 v{QB+8*i+6}, v{QB+8*i+6}, 0, s[62:63]\nv_cndmask_b32 v{QB+8*i+7}, v{QB+8*i+7}, 0, s[62:63]")
    a("s_cbranch_vccz A_go")
    for i in range(4): a(f"v_mov_b32 v{EB+i}, 0xff800000")
    T = KVB + 48
    a(f"""s_mov_b32 s36, 0
    A_mx:
    buffer_load_dwordx4 v[{T}:{T+3}], v9, s[20:23], s36 offen sc1
    buffer_load_dwordx4 v[{T+4}:{T+7}], v9, s[20:23], s36 offen offset:1024 sc1
    s_waitcnt vmcnt(0)""")
    for i in range(4):
        a(mf(SB, T, QB+8*i, "0")); a(mf(SB, T+4, QB+8*i+4, SB)); a("s_nop 15")
        for r in range(8): a(f"v_max3_f32 v{EB+i}, v{EB+i}, v{SB+2*r}, v{SB+2*r+1}")
    a("s_add_u32 s36, s36, 4096\ns_cmp_lt_u32 s36, 65536\ns_cbranch_scc1 A_mx")
    for i in range(4):
        a(f"""s_add_u32 s28, s3, {i}
        s_and_b32 s28, s28, 3
        s_lshl_b32 s28, s28, 10
        s_add_u32 s28, s28, {RED}
        s_lshl_b32 s29, s3, 8
        s_add_u32 s29, s29, s28
        v_add_u32 v6, s29, v8
        ds_write_b32 v6, v{EB+i}
        v_lshl_add_u32 v{EB+4+i}, v3, 2, s28""")
    a("s_waitcnt lgkmcnt(0)\ns_barrier")
    for i in range(4):
        for p in range(8): a(f"ds_read_b32 v{SB+p}, v{EB+4+i} offset:{128*p}")
        a(f"""s_waitcnt lgkmcnt(0)
        v_max3_f32 v{SB}, v{SB}, v{SB+1}, v{SB+2}
        v_max3_f32 v{SB}, v{SB}, v{SB+3}, v{SB+4}
        v_max3_f32 v{SB}, v{SB}, v{SB+5}, v{SB+6}
        v_max_f32 v{SB}, v{SB}, v{SB+7}
        v_sub_f32 v{SB}, 0, v{SB}
        v_cvt_pk_bf16_f32 v{SB+1}, v{SB}, 0
        v_lshlrev_b32 v{SB+2}, 16, v{SB+1}
        v_sub_f32 v{SB+2}, v{SB}, v{SB+2}
        v_cvt_pk_bf16_f32 v{SB+1}, v{SB}, v{SB+2}
        v_and_b32 v{SB+3}, 0xffff0000, v{SB+1}
        v_sub_f32 v{SB+2}, v{SB+2}, v{SB+3}
        v_cvt_pk_bf16_f32 v{SB+2}, v{SB+2}, 0
        v_cndmask_b32 v{QB+8*i+6}, v{QB+8*i+6}, v{SB+1}, s[62:63]
        v_cndmask_b32 v{QB+8*i+7}, v{QB+8*i+7}, v{SB+2}, s[62:63]""")
    a("s_barrier\nA_go:")
    a(mf(SB, KVB, QB, "0")); a(mf(SB, KVB+4, QB+4, SB))
    a(f"s_mov_b32 s31, {F_PREP}\ns_nop 7\ns_nop 3")
    a.rt(4)
    side = []
    def ldA(reg, s, off): side.append(lambda: vm.issue("pf", f"buffer_load_dwordx4 a[{reg}:{reg+3}], v9, s[16:19], s{s} offen offset:{off} sc1"))
    def sa(txt):
        f = side.pop(); side.append(lambda: (a(txt), f()))
    for k in range(8):
        for p in range(2):
            ldA(WOA + 8*k + 4*p, 96+p, 1024*(k % 4))
            if k == 4: sa(f"s_add_u32 s{96+p}, s{96+p}, 4096")
    for t in range(4):
        for i in range(7):
            side.append(lambda i=i: vm.issue("pf", f"buffer_load_dwordx4 v9, s[16:19], s100 offen offset:{1024*(i%4)} sc1 lds"))
            if i == 0: sa(f"s_add_u32 m0, s101, {t*28672}" + (f"\ns_add_u32 s100, s100, {28672-4096}" if t else ""))
            if i == 4: sa("s_add_u32 m0, m0, 4096\ns_add_u32 s100, s100, 4096")
    cur = 0
    for n in range(NWD):
        base = KORD[n] - (n % 4 if n < 16 else (n-16) % 3)
        for p in range(2):
            ldA(WDA + 8*n + 4*p, 98+p, 1024*(KORD[n]-base))
            if base != cur: sa(f"s_add_u32 s{98+p}, s{98+p}, {(1024*(base-cur)) & 0xffffffff}")
        cur = base
    def e(i, sb): a(f"v_exp_f32 v{EB+i}, v{sb+i}")
    def c(p): a(f"v_cvt_pk_bf16_f32 v{PB+p}, v{EB+2*p}, v{EB+2*p+1}")
    def touch(v, s, off=0, pre=""): return lambda: (a(pre), vm.issue("pf", f"buffer_load_dword v242, v{v}, s[16:19], {s} offen offset:{off}"))
    early = [touch(241, "s35", pre=f"s_add_u32 s35, s15, {FL(0)}"), touch(240, "s8"), touch(240, "s4"), touch(9, "s6"), touch(240, "s7"), touch(240, "s7", 2048),
             touch(240, "s7", pre="s_add_u32 s7, s7, 4096"), touch(240, "s7", 2048), touch(240, "s5")]
    def sd(u):
        if u >= 12 and side: side.pop(0)()
        elif u < 12 and early and u not in seen: early.pop(0)(); seen.add(u)
    seen = set()
    for u in range(64):
        kt, qi = u // 4, u % 4
        sc, sn = SB + 16*(u % 2), SB + 16*((u+1) % 2)
        nk, nq = (kt, qi+1) if qi < 3 else (kt+1, 0)
        pk, pq = (kt, qi-1) if qi > 0 else (kt-1, 3)
        Kn = KVB + 16*(nk % 4)
        if qi == 3: vm.wait(("kv", kt+1, 3))
        if u == 11:
            vm.wait("pfl")
            a(f"""v_and_b32 v236, -16, v232
            v_and_b32 v237, -16, v233
            v_and_b32 v238, -16, v234
            v_and_b32 v239, -16, v235
            v_cmp_ne_u32 vcc, s{NONCE}, v236
            v_cmp_ne_u32 s[36:37], s{NONCE}, v237
            v_cmp_ne_u32 s[38:39], s{NONCE}, v238
            v_cmp_ne_u32 s[32:33], s{NONCE}, v239
            s_or_b64 vcc, vcc, s[36:37]
            s_nop 0
            s_or_b64 s[38:39], s[38:39], s[32:33]
            s_or_b64 vcc, vcc, s[38:39]
            s_cbranch_scc1 A_pw
            A_pb:
            s_or_b32 s34, s{NONCE}, s10
            v_cmp_ne_u32 vcc, s34, v232
            v_cmp_ne_u32 s[36:37], s34, v233
            v_cmp_ne_u32 s[38:39], s34, v234
            v_cmp_ne_u32 s[32:33], s34, v235
            s_or_b64 vcc, vcc, s[36:37]
            s_and_b32 s34, s2, 7
            s_or_b64 s[38:39], s[38:39], s[32:33]
            s_lshl_b32 s34, s34, 3
            s_or_b64 vcc, vcc, s[38:39]
            s_lshr_b64 vcc, vcc, s34
            s_and_b32 s34, vcc_lo, 0xff
            s_cselect_b32 s{MODE}, 0, {FAST}""")
        if u < 63: a(mf(sn, Kn, QB+8*nq, "0"))
        e(0, sc); c(6); e(1, sc); c(7); e(2, sc); sd(u); e(3, sc)
        if u < 63: a(mf(sn, Kn+4, QB+8*nq+4, sn))
        e(4, sc); c(0); e(5, sc); c(1); e(6, sc)
        if u == 5: vm.issue("pfl", "buffer_load_dwordx4 v[232:235], v9, s[16:19], s31 offen sc1")
        e(7, sc)
        a(mf(OB+16*pq, KVB+16*(pk % 4)+12, PB+4, OB+16*pq))
        e(8, sc)
        if qi == 1 and kt + 3 < 16: kvload(kt+3, 0)
        c(2); e(9, sc)
        if qi == 1 and kt + 3 < 16: kvload(kt+3, 1)
        c(3); e(10, sc)
        if qi == 1 and kt + 3 < 16: kvload(kt+3, 2)
        e(11, sc)
        if qi == 1 and kt + 3 < 16: kvload(kt+3, 3)
        a(mf(OB+16*qi, KVB+16*(kt % 4)+8, PB, OB+16*qi))
        e(12, sc); c(4); e(13, sc); c(5); e(14, sc)
        if qi != 1: sd(u)
        e(15, sc)
    assert not side and not early, len(side)
    a.rt(5)
    c(6); c(7)
    for i in range(1, 4):
        a(f"""s_add_u32 s28, s3, {i}
        s_and_b32 s28, s28, 3
        s_mul_i32 s28, s28, 12288
        s_add_u32 s28, s28, {RED}
        v_add_u32 v{10+i}, s28, v9""")
    a(mf(OB+48, KVB+48+12, PB+4, OB+48))
    a(f"s_mul_i32 s28, s3, 12288\ns_add_u32 s28, s28, {RED}\nv_add_u32 v10, s28, v9")
    for i in range(1, 4):
        if i == 3: a("s_nop 7")
        for p in range(4):
            r = OB + 16*i + 4*p
            a(f"ds_write_b128 v{10+i}, v[{r}:{r+3}] offset:{(i-1)*4096+p*1024}")
    a(f"""s_mov_b32 s27, s8
    s_waitcnt lgkmcnt(0)
    s_barrier""")
    for i in range(12):
        r = OB + 16 + 4*i
        a(f"ds_read_b128 v[{r}:{r+3}], v10 offset:{i*1024}")
    for i in range(3):
        a.wait(lgkm=8-4*i)
        for r in range(16): a(f"v_add_f32 v{OB+r}, v{OB+r}, v{OB+16+16*i+r}")
    a(f"""v_mov_b32 v11, v{OB+12}
    v_mov_b32 v12, v{OB+12}
    s_nop 1
    v_permlane32_swap_b32 v11, v12
    s_nop 1
    v_rcp_f32 v12, v12
    s_nop 0""")
    for r in range(16): a(f"v_mul_f32 v{OB+r}, v{OB+r}, v12")
    for r in range(8): a(f"v_cvt_pk_bf16_f32 v{PB+r}, v{OB+2*r}, v{OB+2*r+1}")
    a(f"""v_cndmask_b32 v{PB+6}, v{PB+6}, 0, s[62:63]
    v_cndmask_b32 v{PB+7}, v{PB+7}, 0, s[62:63]""")
    lst(a, [f"buffer_store_dwordx4 v[{PB}:{PB+3}], v9, s[16:19], s27 offen", f"buffer_store_dwordx4 v[{PB+4}:{PB+7}], v9, s[16:19], s27 offen offset:1024"])
    signal(a, FL(F_ATT))
    a.rt(6)
    a("s_barrier")
def att_cold(a):
    a(f"""A_pw:
    s_mov_b32 s34, {SPIN}
    A_pw1:
    buffer_load_dwordx4 v[232:235], v9, s[16:19], s31 offen sc1
    s_waitcnt vmcnt(0)
    v_and_b32 v236, -16, v232
    v_and_b32 v237, -16, v233
    v_and_b32 v238, -16, v234
    v_and_b32 v239, -16, v235
    v_cmp_ne_u32 vcc, s{NONCE}, v236
    v_cmp_ne_u32 s[36:37], s{NONCE}, v237
    v_cmp_ne_u32 s[38:39], s{NONCE}, v238
    v_cmp_ne_u32 s[32:33], s{NONCE}, v239
    s_or_b64 vcc, vcc, s[36:37]
    s_nop 0
    s_or_b64 s[38:39], s[38:39], s[32:33]
    s_or_b64 vcc, vcc, s[38:39]
    s_cbranch_scc0 A_pb
    s_sub_u32 s34, s34, 1
    s_cmp_lg_u32 s34, 0
    s_cbranch_scc1 A_pw1
    s_branch A_pb""")

def red_addr(a):
    for i in range(4):
        a(f"""s_xor_b32 s39, s3, {i}
        s_mul_i32 s39, s39, 12288
        s_add_u32 s39, s39, {RED}
        v_add_u32 v{10+i}, s39, v9""")
def reduce4(a, acc, T, side=()):
    for i in range(1, 4):
        if i == 3: a("s_nop 7")
        for p in range(4): a(f"ds_write_b128 v{10+i}, {R(acc+16*i+4*p, 4)} offset:{(i-1)*4096+p*1024}")
    side = list(side)
    for r in range(8):
        for _ in range(2):
            if side: side.pop(0)()
        a(f"""v_accvgpr_read_b32 v14, a{RES+r}
        v_lshlrev_b32 v15, 16, v14
        v_and_b32 v14, 0xffff0000, v14""")
        if acc >= 256:
            a(f"""v_accvgpr_read_b32 v{T+2*r}, a{acc-256+2*r}
            v_accvgpr_read_b32 v{T+2*r+1}, a{acc-256+2*r+1}
            v_add_f32 v{T+2*r}, v{T+2*r}, v15
            v_add_f32 v{T+2*r+1}, v{T+2*r+1}, v14""")
        else:
            a(f"v_add_f32 v{T+2*r}, v{acc+2*r}, v15\nv_add_f32 v{T+2*r+1}, v{acc+2*r+1}, v14")
    a("s_waitcnt lgkmcnt(0)\ns_barrier")
    for i in range(12): a(f"ds_read_b128 v[{T+16+4*i}:{T+19+4*i}], v10 offset:{i*1024}")
    for i in range(3):
        a.wait(lgkm=8-4*i)
        for r in range(16): a(f"v_add_f32 v{T+r}, v{T+r}, v{T+16+16*i+r}")
    for r in range(8): a(f"v_cvt_pk_bf16_f32 v{T+16+r}, v{T+2*r}, v{T+2*r+1}")
def xstore(a, T, name):
    a(f"""s_mul_i32 s38, s24, 28
    s_lshl_b32 s39, s25, 1
    s_add_u32 s38, s38, s39
    s_lshl_b32 s38, s38, 10
    s_add_u32 s38, s38, {DL}
    s_add_u32 s38, s38, {WS[name][0]}""")
    lst(a, [f"buffer_store_dwordx4 v[{T+16+4*j}:{T+19+4*j}], v9, s[16:19], s38 offen offset:{1024*j}" for j in range(2)])
def keep_res(a, T):
    for r in range(8): a(f"v_accvgpr_write_b32 a{RES+r}, v{T+16+r}")

def oproj(a):
    vm = Ctr(a, "vmcnt", 63)
    roles_o(a)
    a(f"""s_cmp_ge_u32 s11, 28
    s_cbranch_scc1 O_skip
    s_and_b32 s36, s24, 6
    v_bfe_u32 v10, v2, 2, 1
    v_add_u32 v10, s36, v10
    v_lshl_add_u32 v11, v10, 2, s3
    v_and_b32 v10, 3, v2""")
    slot_addr(a, 14, 11, 10)
    a(f"""s_lshl_b32 s36, s3, 3
    s_lshl_b32 s30, s24, 5
    s_lshl_b32 s31, s26, 5
    s_add_u32 s30, s30, s36
    s_add_u32 s31, s31, s36
    s_lshl_b32 s30, s30, 10
    s_lshl_b32 s31, s31, 10
    s_add_u32 s36, {DL}, {WS['O0'][0]}
    s_add_u32 s30, s30, s36
    s_add_u32 s31, s31, s36""")
    red_addr(a)
    wait_flags(a, [(FL(F_ATT), 14, 16)])
    a.rt(7)
    AC, FB = 16, 80
    for k in range(8):
        for ib in range(2):
            r = FB + 8*k + 4*ib
            if k == 4: a(f"s_add_u32 s{30+ib}, s{30+ib}, 4096")
            vm.issue((k, ib), f"buffer_load_dwordx4 v[{r}:{r+3}], v9, s[16:19], s{30+ib} offen offset:{1024*(k%4)} sc1")
    for k in range(8):
        for ib in range(2):
            vm.wait((k, ib))
            for ia in range(2):
                t = AC + 16*(2*ib + ia); w = WOA + 8*k + 4*ia; r = FB + 8*k + 4*ib
                a(f"v_mfma_f32_32x32x16_bf16 v[{t}:{t+15}], a[{w}:{w+3}], v[{r}:{r+3}], {'0' if k==0 else 'v[%d:%d]'%(t,t+15)}")
    a("s_nop 3")
    T = FB
    reduce4(a, AC, T)
    xstore(a, T, 'XO0')
    a(f"v_add_f32 v24, v{T}, v{T+1}\nv_mul_f32 v25, v{T}, v{T}\nv_fmac_f32 v25, v{T+1}, v{T+1}")
    for r in range(2, 16): a(f"v_add_f32 v24, v24, v{T+r}\nv_fmac_f32 v25, v{T+r}, v{T+r}")
    a(f"""v_mov_b32 v26, v24
    v_mov_b32 v27, v25
    s_mul_i32 s38, s24, 14
    s_add_u32 s38, s38, s25
    v_permlane32_swap_b32 v24, v26
    v_permlane32_swap_b32 v25, v27
    s_lshl_b32 s38, s38, 8
    s_add_u32 s38, s38, {DL}
    s_add_u32 s38, s38, {WS['ST0'][0]}
    v_add_f32 v24, v24, v26
    v_add_f32 v25, v25, v27
    v_lshlrev_b32 v6, 3, v3""")
    lst(a, "buffer_store_dwordx2 v[24:25], v6, s[16:19], s38 offen")
    keep_res(a, T)
    signal(a, FL(F_O))
    a("s_barrier\nO_skip:")
    a.rt(8)

ACC, WF, CS, TMP = 16, 128, 160, 192
NA = 4
def WRR(i): return 232 + 4*i if i < 6 else 16 + 4*(i-6)
def gu(a):
    vm = Ctr(a, "vmcnt", 63); lg = Ctr(a, "lgkmcnt", 15)
    a(f"""s_and_b32 s24, s2, 7
    s_lshr_b32 s26, s2, 7
    s_lshl_b32 s26, s26, 2
    s_add_u32 s26, s26, s3
    s_lshl_b32 s24, s24, 3
    s_add_u32 s24, s24, s26
    s_bfe_u32 s25, s2, 0x40003
    s_lshr_b32 s36, s26, 1
    s_mul_i32 s36, s36, 7
    v_min_u32 v10, 13, v2
    v_lshrrev_b32 v11, 1, v10
    v_add_u32 v11, s36, v11
    v_and_b32 v10, 1, v10
    s_and_b32 s36, s26, 1
    s_lshl_b32 s36, s36, 1
    v_add_u32 v10, s36, v10""")
    slot_addr(a, 14, 11, 10)
    a(f"""s_mul_i32 s26, s24, {28*1024}
    s_add_u32 s26, s26, {DL}
    s_add_u32 s26, s26, {WS['XO0'][0]}
    s_mul_i32 s28, s3, 7168
    s_mul_i32 s27, s25, {7*28672}
    s_add_u32 s27, s27, s28
    s_add_u32 s27, s27, {WS['WGU'][0]}
    v_mov_b32 v10, v9
    v_add_u32 v11, {2*28672}, v9
    v_add_u32 v12, {4*28672}, v9
    v_mul_u32_u24 v5, {7*256}, v4
    v_lshl_add_u32 v5, v3, 3, v5
    s_mul_i32 s30, s24, {14*256}
    s_add_u32 s30, s30, {DL}
    s_add_u32 s30, s30, {WS['ST0'][0]}
    s_mul_i32 s31, s25, {7*1024}
    s_add_u32 s31, s31, {WS['CSF'][0]}
    s_add_u32 s32, s31, 4096
    s_mul_i32 s33, s24, 112
    s_mul_i32 s34, s25, 7
    s_add_u32 s33, s33, s34
    s_lshl_b32 s33, s33, 10
    s_add_u32 s33, s33, {DL}
    s_add_u32 s33, s33, {WS['H0'][0]}
    s_add_u32 s34, s33, 4096""")
    roles_w = """s_lshr_b32 s36, s2, 3
    s_mul_i32 s37, s36, 9363
    s_lshr_b32 s37, s37, 16
    s_mul_i32 s37, s37, 7
    s_sub_u32 s36, s36, s37
    s_lshl_b32 s36, s36, 1
    s_and_b32 s37, s3, 1
    s_add_u32 s96, s36, s37
    s_xor_b32 s97, s96, 1
    s_mul_i32 s36, s3, 28"""
    a(roles_w)
    for p in range(2): a(f"s_mul_i32 s{96+p}, s{96+p}, 112\ns_add_u32 s{96+p}, s{96+p}, s36\ns_lshl_b32 s{96+p}, s{96+p}, 10\ns_add_u32 s{96+p}, s{96+p}, {WS['WD'][0]}")
    wcur = [0, 0]
    def wld(i):
        n, p = NWD + i // 2, i % 2
        base = KORD[n] - (n-16) % 3
        if base != wcur[p]: a(f"s_add_u32 s{96+p}, s{96+p}, {1024*(base-wcur[p])}"); wcur[p] = base
        vm.issue(("wd", i), f"buffer_load_dwordx4 v[{WRR(i)}:{WRR(i)+3}], v9, s[16:19], s{96+p} offen offset:{1024*(KORD[n]-base)} sc1")
    def dma(t, i):
        if i % 4 == 0: a(f"s_add_u32 m0, s28, {(t % 5)*28672 + i*1024}\ns_add_u32 s29, s27, {t*28672 + i*1024}")
        vm.issue(("w", t, i), f"buffer_load_dwordx4 v9, s[16:19], s29 offen offset:{1024*(i%4)} sc1 lds")
    def xld(ks):
        vm.issue(("x", ks), f"buffer_load_dwordx4 a[{4*ks}:{4*ks+3}], v9, s[16:19], s26 offen offset:{1024*(ks%4)} sc1")
        if ks % 4 == 3: a("s_add_u32 s26, s26, 4096")
    def rd(t, ks, reg):
        slot = t % 5
        lg.issue(("r", t, ks), f"ds_read_b128 v[{reg}:{reg+3}], v{10+slot//2} offset:{(slot%2)*28672 + ks*1024}")
    def mfma(t, reg, ks):
        d = ACC + 16*t
        a(f"v_mfma_f32_32x32x16_bf16 v[{d}:{d+15}], v[{reg}:{reg+3}], a[{4*ks}:{4*ks+3}], {'0' if ks==0 else 'v[%d:%d]'%(d,d+15)}")
    def csmfma(t):
        d = ACC + 16*t
        a(f"v_mfma_f32_32x32x16_bf16 v[{d}:{d+15}], v[{CS+4*t}:{CS+4*t+3}], v[{TMP}:{TMP+3}], v[{d}:{d+15}]")
    SIG, C1 = TMP+4, TMP+5
    def stats_ops():
        o = []; S0 = TMP + 8
        for i in range(1, 7): o += [f"v_add_f32 v{S0}, v{S0}, v{S0+2*i}", f"v_add_f32 v{S0+1}, v{S0+1}, v{S0+2*i+1}"]
        o += [f"v_mov_b32 v{S0+2}, v{S0}", f"v_mov_b32 v{S0+3}, v{S0+1}", "s_nop 1",
              f"v_permlane32_swap_b32 v{S0}, v{S0+2}", f"v_permlane32_swap_b32 v{S0+1}, v{S0+3}", "s_nop 1",
              f"v_add_f32 v{S0}, v{S0}, v{S0+2}", f"v_add_f32 v{S0+1}, v{S0+1}, v{S0+3}",
              f"v_mul_f32 v{S0}, {hex(f2u(-1.0/D_))}, v{S0}", f"v_mul_f32 v{S0+1}, {hex(f2u(1.0/D_))}, v{S0+1}",
              f"v_fma_f32 v{S0+1}, -v{S0}, v{S0}, v{S0+1}", f"v_max_f32 v{S0+1}, 0, v{S0+1}",
              f"v_add_f32 v{S0+1}, {hex(f2u(1e-5))}, v{S0+1}",
              f"v_cvt_pk_bf16_f32 v{TMP}, v{S0}, v{S0}", f"v_rsq_f32 v{C1}, v{S0+1}",
              f"v_and_b32 v{S0+2}, 0xffff0000, v{TMP}", f"v_mul_f32 v{SIG}, v{S0+1}, v{C1}",
              f"v_sub_f32 v{S0+2}, v{S0}, v{S0+2}", f"v_mul_f32 v{C1}, {hex(f2u(-math.log2(math.e)))}, v{C1}",
              f"v_cvt_pk_bf16_f32 v{TMP+1}, v{S0+2}, 0", f"v_mov_b32 v{TMP+2}, v{TMP}", f"v_mov_b32 v{TMP+3}, v{TMP+1}"]
        return [(x, 4) for x in o]
    def epi_ops(t):
        d = ACC + 16*t; E = TMP + 24; P = TMP + 32 + 4*(t % 2)
        o = []
        for half in range(2):
            js = range(4*half, 4*half+4)
            o += [(f"v_mul_f32 v{E+j}, v{C1}, v{d+j}", 4) for j in js]
            o += [(f"v_exp_f32 v{E+j}, v{E+j}", 8) for j in js]
            o += [(f"v_fma_f32 v{E+j}, v{E+j}, v{SIG}, v{SIG}", 4) for j in js]
            o += [(f"v_rcp_f32 v{E+j}, v{E+j}", 8) for j in js]
            o += [(f"v_mul_f32 v{E+j}, v{E+j}, v{d+8+j}", 4) for j in js]
            o += [(f"v_cvt_pk_bf16_f32 v{P+2*half+q}, v{E+4*half+2*q}, v{E+4*half+2*q+1}", 4) for q in range(2)]
        o += [((("st", t), f"buffer_store_dwordx4 v[{P}:{P+3}], v9, s[16:19], s{33 if t<4 else 34} offen offset:{1024*(t%4)}"), 8)]
        if t < 4: o += [((lambda i=6+4*t+k: wld(i)), 12) for k in range(4)]
        return o
    q = []
    def fill(budget):
        while q and budget >= q[0][1]:
            op, c = q.pop(0); budget -= c
            if isinstance(op, tuple): lst(a, op[1]); vm.q.append(op[0])
            elif callable(op): op()
            else: a(op)
    for t in range(NA): rd(t, 0, WF + 4*t)
    wait_flags(a, [(FL(F_O), 14, 16)])
    a.rt(9)
    for ks in range(8): xld(ks)
    other = [(lambda i=i: vm.issue("stat", f"buffer_load_dwordx2 v[{TMP+8+2*i}:{TMP+9+2*i}], v5, s[16:19], s30 offen offset:{256*i} sc1")) for i in range(7)]
    other += [(lambda i=i: dma(NA, i)) for i in range(7)]
    other += [(lambda t=t: vm.issue("cs", f"buffer_load_dwordx4 v[{CS+4*t}:{CS+4*t+3}], v9, s[16:19], s{31 if t<4 else 32} offen offset:{1024*(t%4)} sc1")) for t in range(7)]
    other += [(lambda i=i: wld(i)) for i in range(6)]
    for ks in range(28):
        cur, nxt = WF + 16*(ks % 2), WF + 16*((ks+1) % 2)
        vm.wait(("x", ks))
        if ks == 27: vm.wait(("w", NA, 6)); lg.drain(); a("s_barrier")
        if ks == 18: vm.wait("stat"); q += stats_ops()
        for t in range(NA):
            lg.wait(("r", t, ks))
            mfma(t, cur + 4*t, ks)
            if ks < 27: rd(t, ks+1, nxt + 4*t)
            elif t < 3: rd(NA, t, WF + 4*t)
            if t == 0 and ks + 8 < 28: xld(ks + 8)
            if t == 2 and other: other.pop(0)()
            fill(16)
    assert not q and not other
    vm.wait("cs")
    a("s_nop 0")
    for t in range(NA): csmfma(t)
    a.rt(10)
    pend = list(range(NA))
    seq = [(t, ks) for t in range(NA, 7) for ks in range(28)]
    gap = 0; ready = {t: 2 for t in range(NA)}; sigA = False
    for n, (t, ks) in enumerate(seq):
        if n + 3 < len(seq):
            t2, k2 = seq[n+3]
            if k2 == 0: vm.wait(("w", t2, 6)); a("s_barrier")
        lg.wait(("r", t, ks))
        mfma(t, WF + 4*(n % 4), ks)
        if n + 3 < len(seq): rd(t2, k2, WF + 4*((n+3) % 4))
        busy = t == NA and ks < 14
        if busy: dma(5 + ks // 7, ks % 7)
        while pend and ready[pend[0]] <= gap: q += epi_ops(pend.pop(0))
        if t == 6 and ks == 16:
            assert not any(isinstance(op, tuple) and op[0][1] < 4 for op, c in q)
            vm.wait(("st", 3)); signal(a, FL(F_GUA), tmp=14, vm=""); vm.q.append("sig")
        else: fill(12 if busy else 20)
        gap += 1
        if ks == 27:
            csmfma(t); pend.append(t); ready[t] = gap + 4
            fill(16)
    a("s_nop 7\ns_nop 3")
    while pend: q += epi_ops(pend.pop(0))
    fill(10**9)
    signal(a, FL(F_GUB))
    a.rt(11)
    a("s_barrier")

def down(a):
    vm = Ctr(a, "vmcnt", 63)
    roles_tt(a); qkv_wsetup(a)
    a("s_cmp_lg_u32 s15, 0\ns_cselect_b32 s22, 0, s22")
    roles_o(a)
    a(f"""s_cmp_ge_u32 s11, 28
    s_cbranch_scc1 D_skip
    s_bfe_u32 s36, s24, 0x10002
    s_lshl_b32 s36, s36, 2
    s_add_u32 s36, s36, s3
    s_lshl_b32 s36, s36, 2
    v_and_b32 v11, 3, v2
    v_add_u32 v11, s36, v11
    v_bfe_u32 v10, v2, 2, 1
    s_and_b32 s36, s24, 2
    v_add_u32 v10, s36, v10""")
    slot_addr(a, 14, 11, 10)
    for d, src, base in ((30, 24, 'H0'), (31, 26, 'H0')):
        a(f"""s_mul_i32 s{d}, s{src}, 112
        s_mul_i32 s36, s3, 28
        s_add_u32 s{d}, s{d}, s36
        s_lshl_b32 s{d}, s{d}, 10
        s_add_u32 s{d}, s{d}, {WS[base][0]}""")
    a(f"s_add_u32 s30, s30, {DL}\ns_add_u32 s31, s31, {DL}")
    red_addr(a)
    wait_flags(a, [(FL(F_GUA), 14, 80)])
    a.rt(12)
    HB, NS = 80, 19
    cur = {28: 0, 30: 0}
    def ld(kind, n):
        sb = 28 if kind == 'w' else 30
        base = KORD[n] - (n % 4 if n < 16 else (n-16) % 3)
        for p in range(2):
            if base != cur[sb]: a(f"s_add_u32 s{sb+p}, s{sb+p}, {(1024*(base-cur[sb])) & 0xffffffff}")
            r = HB + 8*(n % NS) + 4*p
            vm.issue((kind, n, p), f"buffer_load_dwordx4 v[{r}:{r+3}], v9, s[16:19], s{sb+p} offen offset:{1024*(KORD[n]-base)} sc1")
        cur[sb] = base
    LA = 8
    for n in range(LA): ld('h', n)
    nw = NWD; nd = 0
    for n in range(28):
        if n == 5: a(f"s_add_u32 s35, s15, {FL(F_GUB)}"); vm.issue("fb", "buffer_load_dwordx2 v[80:81], v14, s[16:19], s35 offen sc1")
        if n == 8:
            vm.wait("fb")
            a(f"v_cmp_ne_u32 vcc, s{NONCE}, v80\ns_nop 4\ns_cbranch_vccnz D_pw\nD_pb:")
        for ib in range(2):
            vm.wait(('h', n, ib), ('w', n, 1))
            for ia in range(2):
                t = 16*(2*ib + ia); r = HB + 8*(n % NS) + 4*ib
                w = R(256 + WDA + 8*n + 4*ia if n < NWD else WRR(2*(n-NWD) + ia), 4)
                a(f"v_mfma_f32_32x32x16_bf16 a[{t}:{t+15}], {w}, v[{r}:{r+3}], {'0' if n==0 else 'a[%d:%d]'%(t,t+15)}")
            if ib == 0 and n + LA < 28: ld('h', n + LA)
            if n >= 20: vm.q.append("dma"); qkv_wdma(a); nd += 1
    a.rt(13)
    a("s_nop 3")
    T = HB
    reduce4(a, 256, T, [lambda: qkv_wdma(a)]*(28-nd))
    a("s_cmp_lg_u32 s15, 0\ns_cbranch_scc1 D_out")
    xstore(a, T, 'XD0')
    keep_res(a, T)
    signal(a, FL(F_D))
    a("s_barrier\ns_branch D_end\nD_skip:\ns_cmp_lg_u32 s15, 0\ns_cbranch_scc1 L_fin")
    for i in range(28): qkv_wdma(a)
    a("D_end:")
    a.rt(14)
def down_cold(a):
    a(f"""D_pw:
    s_mov_b32 s34, {SPIN}
    D_pw1:
    buffer_load_dwordx2 v[80:81], v14, s[16:19], s35 offen sc1
    s_waitcnt vmcnt(0)
    v_cmp_ne_u32 vcc, s{NONCE}, v80
    s_nop 4
    s_cbranch_vccz D_pb
    s_sub_u32 s34, s34, 1
    s_cmp_lg_u32 s34, 0
    s_cbranch_scc1 D_pw1
    s_branch D_pb
    D_out:""")
    a.srd(20, POUT, S_*D_*2)
    rm_addr(a)
    a("s_waitcnt vmcnt(0)")
    for g in range(4): a(f"buffer_store_dwordx2 v[{80+16+2*g}:{80+17+2*g}], v5, s[20:23], s37 offen offset:{16*g}")
    a("s_branch L_fin")

def build(path):
    a = A()
    a.raw(kernel_head(KN))
    prologue(a)
    a.rt(0)
    qkv(a, 0)
    a("L_layer:")
    att(a); oproj(a); gu(a); down(a)
    a.rt_out(0)
    a.rt(0)
    qkv(a, 1)
    a("s_branch L_layer")
    att_cold(a); down_cold(a)
    for x in cold: a(x)
    a("L_fin:")
    a.rt(14)
    a.rt_out(0)
    a("L_exit:\ns_endpgm")
    HDR = open('interleave_layers__grouped_kv_mqa__glu_gated_glu__prompt.s.ref').read().split("; Override")[0]
    t = HDR + f"; @launch grid=(256,1,1) block=(256,1,1) lds={LDS_TOTAL}\n" + '.amdgcn_target "amdgcn-amd-amdhsa--gfx950"\n.text\n'
    t += a.text() + '.section .rodata,"a"\n' + kernel_desc(KN, 256, 256)
    open(path, "w").write(t)
if __name__ == "__main__":
    A.stamps = int(sys.argv[2]) if len(sys.argv) > 2 else 0
    build(sys.argv[1])
```
